```python
import torch

def _softmax(x, axis=-1):
    return torch.softmax(x, dim=axis)
def _gelu(x):
    return torch.nn.functional.gelu(x, approximate="tanh")
def _silu(x):
    return torch.nn.functional.silu(x)
def _sigmoid(x):
    return torch.sigmoid(x)
def _layernorm(x, axis=-1, eps=1e-5):
    m = x.mean(dim=axis, keepdim=True)
    v = x.var(dim=axis, keepdim=True, unbiased=False)
    return (x - m) / torch.sqrt(v + eps)
def _scatter_add(tgt, idx, src, axis=0):
    return tgt.clone().index_add_(axis, idx, src)
def _segment_sum(src, seg, n):
    out = torch.zeros((n,) + src.shape[1:], dtype=src.dtype)
    return out.index_add_(0, seg, src)
def _pad(x, pw):
    flat = tuple(v for pair in reversed(pw) for v in pair)
    return torch.nn.functional.pad(x, flat)

kernel_name = 'gated_mix__mha_block_cached__moe_arch_mod__decode'

def setup_inputs():

    _w = (lambda a: (lambda t: t.to(torch.bfloat16) if t.is_floating_point() else t)(torch.as_tensor(a)))
    def _A_setup():
        B, Sq, D = 8, 1, 512
        H, Sk, Dh = 32, 4096, 128
        return {
            "x": _w((lambda *s: torch.randn(*s, dtype=torch.bfloat16) * 0.05)(B, Sq, D)),
            "k_cache": _w((lambda *s: torch.randn(*s, dtype=torch.bfloat16) * 3.2)(B, H, Sk, Dh)),
            "v_cache": _w((lambda *s: torch.randn(*s, dtype=torch.bfloat16) * 1.6)(B, H, Sk, Dh)),
            "wq": _w((lambda *s: torch.randn(*s, dtype=torch.bfloat16) * 3.2)(D, H * Dh) * (D ** -0.5)),
            "wo": _w((lambda *s: torch.randn(*s, dtype=torch.bfloat16) * 1.6)(H * Dh, D) * ((H * Dh) ** -0.5)),
        }
    _A_in = _A_setup()

    def _B_setup():
        B, S, D, F, C = 8, 1, 512, 1792, 1
        return {
            "x": _w((lambda *s: torch.randn(*s, dtype=torch.bfloat16) * 0.05)(B, S, D)),
            "w_r": _w((lambda *s: torch.randn(*s, dtype=torch.bfloat16) * 1.6)(D)),
            "w_gate": _w((lambda *s: torch.randn(*s, dtype=torch.bfloat16) * 0.1)(D, F)),
            "w_up": _w((lambda *s: torch.randn(*s, dtype=torch.bfloat16) * 0.1)(D, F)),
            "w_down": _w((lambda *s: torch.randn(*s, dtype=torch.bfloat16) * 0.1)(F, D)),
        }
    _B_in = _B_setup()

    return {
        "A_x": _A_in["x"],
        "A_k_cache": _A_in["k_cache"],
        "A_v_cache": _A_in["v_cache"],
        "A_wq": _A_in["wq"],
        "A_wo": _A_in["wo"],
        "B_x": _B_in["x"],
        "B_w_r": _B_in["w_r"],
        "B_w_gate": _B_in["w_gate"],
        "B_w_up": _B_in["w_up"],
        "B_w_down": _B_in["w_down"],
        "gate_w": _w((lambda *s: torch.randn(*s, dtype=torch.bfloat16) * 0.05)(512) * 16.0),
    }

def reference(A_x, A_k_cache, A_v_cache, A_wq, A_wo, B_x, B_w_r, B_w_gate, B_w_up, B_w_down, gate_w):
    def _A_ref(x, k_cache, v_cache, wq, wo):
        B, Sq, D = x.shape
        H, Dh = 32, 128
        q = (lambda x, *d: x.permute(*d))((x @ wq).reshape(B, Sq, H, Dh), 0, 2, 1, 3)
        scores = torch.einsum("bhqd,bhkd->bhqk", q, k_cache) * (Dh ** -0.5)
        p = _softmax(scores, axis=-1)
        o = torch.einsum("bhqk,bhkd->bhqd", p, v_cache)
        return (lambda x, *d: x.permute(*d))(o, 0, 2, 1, 3).reshape(B, Sq, H * Dh) @ wo

    def _B_ref(x, w_r, w_gate, w_up, w_down):
        B, S, D = x.shape
        C = 1
        r = x @ w_r
        idx = torch.argsort(-r, axis=-1)[:, :C]
        idx_e = (lambda x, n, axis: torch.repeat_interleave(x, n, dim=axis))(idx.reshape(B, C, 1), D, axis=2)
        x_sel = (lambda x, i, axis: torch.take_along_dim(x, i, dim=axis))(x, idx_e, axis=1)
        g = _silu(x_sel @ w_gate)
        u = x_sel @ w_up
        y = (g * u) @ w_down
        r_sel = _sigmoid((lambda x, i, axis: torch.take_along_dim(x, i, dim=axis))(r, idx, axis=1))
        y = y * r_sel.reshape(B, C, 1)
        b_off = (torch.arange(B) * S).reshape(B, 1)
        flat_idx = (idx + b_off).reshape(B * C)
        zero = (x * 0.0).reshape(B * S, D)
        upd = _scatter_add(zero, flat_idx, y.reshape(B * C, D), axis=0)
        return x + upd.reshape(B, S, D)

    x = A_x
    g = _sigmoid((x * gate_w).sum(-1, keepdims=True))
    a = _A_ref(x, A_k_cache, A_v_cache, A_wq, A_wo)
    b = _B_ref(x, B_w_r, B_w_gate, B_w_up, B_w_down)
    return g * a + (1 - g) * b
```

```python
import re

_REG = re.compile(r"\b([vas])(\d+)\b|\b([vas])\[(\d+):(\d+)\]|\b(vcc|exec|scc|m0)\b")

def regs_of(op):
    out = []
    for m in _REG.finditer(op):
        if m.group(1): out.append((m.group(1), int(m.group(2))))
        elif m.group(3): out += [(m.group(3), i) for i in range(int(m.group(4)), int(m.group(5)) + 1)]
        else:
            n = m.group(6)
            if n == "vcc": out += [("s", 106), ("s", 107)]
            elif n == "exec": out += [("s", 126), ("s", 127)]
    return out

TRANS = ("v_exp_f32", "v_log_f32", "v_rcp_f32", "v_rsq_f32", "v_sqrt_f32", "v_sin_f32", "v_cos_f32")

class Ins:
    __slots__ = ("text", "mn", "cls", "dst", "src", "dpp", "ws", "srcC", "srcAB")

def split_ops(s):
    out, depth, cur = [], 0, ""
    for ch in s:
        if ch == "[": depth += 1
        if ch == "]": depth -= 1
        if ch == "," and depth == 0: out.append(cur.strip()); cur = ""
        else: cur += ch
    if cur.strip(): out.append(cur.strip())
    return out

def parse(text):
    I = Ins(); I.text = text
    t = text.split(";")[0].strip()
    parts = t.split(None, 1)
    mn = parts[0]; rest = parts[1] if len(parts) > 1 else ""
    I.mn = mn; I.dpp = mn.endswith("_dpp") or "row_" in rest or "quad_perm" in rest
    I.ws = 1; I.srcC = []; I.srcAB = []
    ops = split_ops(rest)
    ops = [o.split(" ")[0] if not o.startswith("quad_perm") else "" for o in ops]
    I.dst, I.src = [], []
    if mn == "s_nop":
        I.cls = "nop"; I.ws = int(rest, 0) + 1
    elif mn.startswith("v_mfma"):
        I.cls = "mfma"; I.dst = regs_of(ops[0]); I.srcAB = regs_of(ops[1]) + regs_of(ops[2]); I.srcC = regs_of(ops[3]); I.src = I.srcAB + I.srcC
    elif mn.startswith("v_cmp"):
        I.cls = "valu"; I.dst = regs_of(ops[0]); I.src = sum((regs_of(o) for o in ops[1:]), [])
    elif mn.startswith("v_permlane"):
        I.cls = "perm"; I.dst = regs_of(ops[0]) + regs_of(ops[1]); I.src = list(I.dst)
    elif mn.startswith("v_readlane") or mn.startswith("v_readfirstlane"):
        I.cls = "rdlane"; I.dst = regs_of(ops[0]); I.src = sum((regs_of(o) for o in ops[1:]), [])
    elif mn.startswith("v_dot"):
        I.cls = "dot"; I.dst = regs_of(ops[0]); I.srcAB = regs_of(ops[1]) + regs_of(ops[2])
        I.srcC = regs_of(ops[3]) if len(ops) > 3 else regs_of(ops[0]); I.src = I.srcAB + I.srcC
    elif mn.startswith("v_"):
        base = mn.replace("_dpp", "").replace("_e32", "").replace("_e64", "")
        I.cls = "trans" if base in TRANS else "valu"
        I.dst = regs_of(ops[0]); I.src = sum((regs_of(o) for o in ops[1:]), [])
        if base in ("v_add_co_u32", "v_sub_co_u32", "v_addc_co_u32"):
            I.dst += regs_of(ops[1]); I.src = sum((regs_of(o) for o in ops[2:]), [])
        if base in ("v_fmac_f32",) or I.dpp: I.src += regs_of(ops[0])
        if base == "v_cndmask_b32" and len(ops) == 3: I.src += regs_of("vcc")
    elif mn.startswith("buffer_") or mn.startswith("global_"):
        I.cls = "vmem"
        if "load" in mn: I.dst = regs_of(ops[0]); I.src = sum((regs_of(o) for o in ops[1:]), [])
        else: I.src = sum((regs_of(o) for o in ops), [])
        if "store_dwordx4" in mn or "store_dwordx3" in mn:
            I.cls = "vmem_wst"; I.srcC = regs_of(ops[0]) if mn.startswith("buffer_") else regs_of(ops[1])
    elif mn.startswith("ds_"):
        I.cls = "ds"
        if "read" in mn or "permute" in mn or "swizzle" in mn: I.dst = regs_of(ops[0]); I.src = sum((regs_of(o) for o in ops[1:]), [])
        else: I.src = sum((regs_of(o) for o in ops), [])
    elif mn.startswith("s_"):
        I.cls = "salu"
        if ops and not mn.startswith(("s_cmp", "s_cbranch", "s_branch", "s_waitcnt", "s_barrier", "s_setprio", "s_sleep", "s_endpgm")):
            I.dst = regs_of(ops[0]); I.src = sum((regs_of(o) for o in ops[1:]), [])
    else:
        raise ValueError("unknown instr " + text)
    return I

VALUC = ("valu", "trans", "dot", "perm", "rdlane")

def need(p, c):
    n = 0
    pd = set(p.dst); cs = set(c.src); cd = set(c.dst)
    pdv = {r for r in pd if r[0] in "va"}; pds = {r for r in pd if r[0] == "s"}
    if p.cls in VALUC:
        if pdv & cs:
            if c.dpp: n = max(n, 2)
            if c.cls == "mfma": n = max(n, 2)
            if c.cls == "rdlane": n = max(n, 1)
            if c.cls == "perm": n = max(n, 2)
            if p.cls == "trans" and c.cls != "trans": n = max(n, 1)
        if p.cls == "dot":
            if c.cls == "dot" and c.mn == p.mn:
                if pdv & set(c.srcAB): n = max(n, 3)
            elif pdv & (cs | cd): n = max(n, 3)
        if pds & cs:
            if c.cls in VALUC or c.cls == "mfma": n = max(n, 4 if c.cls == "rdlane" else 2)
            if c.cls in ("vmem", "vmem_wst"): n = max(n, 5)
            if c.cls == "salu": n = max(n, 1)
    if p.cls == "mfma":
        if c.cls == "mfma":
            if pdv & set(c.srcAB): n = max(n, 8)
            if pdv & set(c.srcC) and set(c.srcC) != pd: n = max(n, 6)
        elif pdv & (cs | cd): n = max(n, 8)
        if c.cls in VALUC and set(p.srcC) & cd: n = max(n, 3)
    if p.cls == "vmem_wst" and set(p.srcC) & cd:
        n = max(n, 2)
    return n

class Asm:
    def __init__(self):
        self.lines = []; self.hist = []; self.nops = 0
    def raw(self, s):
        self.lines.append(s)
    def label(self, name):
        self.lines.append(name + ":")
    def fence(self, n=8):
        self("s_nop %d" % (n - 1))
    def __call__(self, text):
        for t in text.split("\n"):
            t = t.strip()
            if not t or t.startswith(";"):
                if t: self.lines.append("    " + t)
                continue
            if t.endswith(":"):
                self.lines.append(t); continue
            c = parse(t)
            dist = 0; req = 0
            for p in reversed(self.hist[-12:]):
                r = need(p, c) - dist
                if r > req: req = r
                dist += p.ws
                if dist >= 12: break
            if req > 0:
                nop = parse("s_nop %d" % (req - 1)); self.hist.append(nop); self.lines.append("    s_nop %d" % (req - 1)); self.nops += 1
            self.hist.append(c); self.lines.append("    " + t)
    def text(self):
        return "\n".join(self.lines) + "\n"
```

```python
import sys, struct
from asmlib import Asm
KN = "gated_mix__mha_block_cached__moe_arch_mod__decode_kernel"
HDR = open("gated_mix__mha_block_cached__moe_arch_mod__decode.s.ref").read().split("; Override launch")[0] if False else ""

def f32(x): return "0x%08x" % struct.unpack("<I", struct.pack("<f", x))[0]
LOG2E = 1.4426950408889634
SCALE = 128 ** -0.5
DPPF = "row_mask:0xf bank_mask:0xf"
def brev4(n): return ((n & 1) << 3) | ((n & 2) << 1) | ((n & 4) >> 1) | ((n & 8) >> 3)

L_Q, L_GU, L_SM, L_O = 0, 2048, 4096, 4608
LDS_BYTES = 8192
WS_A, WS_Y, WS_TS = 0, 1 << 20, 4 << 20

def gen(W=5, R=40, W0=12, nB1=30, rate=2, burst2=4, hwin=6, wflag="", ts=False, kvflag="nt", prio=True, spin=1 << 22):
    A = Asm()
    A.raw(f"; @launch grid=(256,1,1) block=(512,1,1) lds={LDS_BYTES}")
    A.raw('.amdgcn_target "amdgcn-amd-amdhsa--gfx950"')
    A.raw(f".text\n.globl {KN}\n.p2align 8\n.type {KN},@function\n{KN}:")
    tsn = [0]
    def stamp(i):
        if ts: A(f"s_memrealtime s[{64+2*i}:{65+2*i}]") if False else A(f"s_memrealtime s[{TSB+2*i}:{TSB+1+2*i}]")
    TSB = 76
    A("s_cmp_ge_u32 s2, 256\ns_cbranch_scc1 L_done")
    stamp(0)
    A("s_load_dwordx16 s[16:31], s[0:1], 0")
    A("s_load_dwordx8 s[32:39], s[0:1], 64")
    A("s_load_dwordx4 s[40:43], s[0:1], 96")
    A("s_and_b32 s3, s2, 31")
    A("s_lshr_b32 s4, s2, 5")
    A("v_lshrrev_b32 v1, 6, v0")
    A("v_and_b32 v2, 63, v0")
    A("v_readfirstlane_b32 s5, v1")
    A("v_and_b32 v3, 15, v2")
    A("v_lshrrev_b32 v4, 4, v2")
    A("v_mov_b32 v10, 0xffff")
    A("v_mov_b32 v11, 0xffff0000")
    for r in range(4):
        A(f"v_cmp_eq_u32 vcc, {2*r}, v3")
        A(f"v_cndmask_b32 v{6+r}, 0, v10, vcc")
        A(f"v_cmp_eq_u32 vcc, {2*r+1}, v3")
        A(f"v_cndmask_b32 v{6+r}, v{6+r}, v11, vcc")
    A("s_mov_b32 s92, 0xffff0000")
    A(f"s_mov_b32 s93, {f32(LOG2E)}")
    A("s_cmp_ge_u32 s5, 4\ns_cbranch_scc1 L_helper")

    def bf16r(d, s):
        A(f"v_cvt_pk_bf16_f32 v{d}, v{s}, v{s}")
        A(f"v_and_b32 v{d}, s92, v{d}")
    def wave_reduce(op, v, t):
        for d in (8, 4, 2, 1):
            A(f"{op}_dpp v{v}, v{v}, v{v} row_ror:{d} {DPPF}")
        for p in ("v_permlane16_swap_b32", "v_permlane32_swap_b32"):
            A(f"v_mov_b32 v{t}, v{v}")
            A(f"{p} v{v}, v{t}")
            A(f"{op} v{v}, v{v}, v{t}")
    def buildA(aset, src, lane):
        for r in range(4):
            A(f"v_and_b32_dpp v{aset+r}, v{src}, v{6+r} row_newbcast:{lane} {DPPF}")
    def ts_store(nst):
        if not ts: return
        A("s_getreg_b32 s94, hwreg(HW_REG_XCC_ID)")
        A("s_waitcnt lgkmcnt(0)")
        A("s_lshl_b32 s95, s2, 3\ns_add_u32 s95, s95, s5\ns_lshl_b32 s95, s95, 6")
        A(f"s_add_u32 s95, s95, {WS_TS}")
        A("s_mov_b32 s96, s42\ns_and_b32 s97, s43, 0xffff\ns_mov_b32 s98, 0x1000000\ns_mov_b32 s99, 0x00020000")
        A("s_mov_b64 exec, 1")
        A("v_mov_b32 v1, s95")
        for i in range(8):
            A(f"v_mov_b32 v{16+i}, s{TSB+2*i}")
        A("v_mov_b32 v24, s94")
        A("buffer_store_dwordx4 v[16:19], v1, s[96:99], 0 offen")
        A("buffer_store_dwordx4 v[20:23], v1, s[96:99], 0 offen offset:16")
        A("buffer_store_dword v24, v1, s[96:99], 0 offen offset:32")
        A("s_waitcnt vmcnt(0)")

    ASET = [16, 20, 24]; ACC = 12; Q = 28; T0 = 32; S0 = 64; TMP = 80; RING = 96
    assert RING + 4 * R <= 256
    if prio: A("s_setprio 3")
    A("v_lshlrev_b32 v1, 12, v1")
    A("v_lshl_add_u32 v1, v2, 4, v1")
    A("s_lshl_b32 s6, s2, 20")
    A("s_mov_b32 s44, 0xcccccccc\ns_mov_b32 s45, 0xcccccccc\ns_mov_b32 s46, 0xaaaaaaaa\ns_mov_b32 s47, 0xaaaaaaaa")
    A("s_waitcnt lgkmcnt(0)")
    stamp(1)
    A("s_add_u32 s8, s18, s6\ns_addc_u32 s9, s19, 0\ns_and_b32 s9, s9, 0xffff\ns_mov_b32 s10, 0x100000\ns_mov_b32 s11, 0x00020000")
    A("s_add_u32 s12, s20, s6\ns_addc_u32 s13, s21, 0\ns_and_b32 s13, s13, 0xffff\ns_mov_b32 s14, 0x100000\ns_mov_b32 s15, 0x00020000")
    A("s_mov_b32 s7, 0")
    NL = 256
    st = dict(issued=0, consumed=0, landed=0)
    def ring(n): return RING + 4 * (n % R)
    def issue():
        n = st["issued"]
        assert n - R < st["consumed"], (n, st)
        srd = 8 if n < NL else 12
        if n == NL: A("s_mov_b32 s7, 0")
        r = ring(n)
        A(f"buffer_load_dwordx4 v[{r}:{r+3}], v1, s[{srd}:{srd+3}], s7 offen offset:{(n & 3) * 1024} {kvflag}")
        if n & 3 == 3 and n != NL - 1 and n != 2 * NL - 1: A("s_add_u32 s7, s7, 0x4000")
        st["issued"] += 1
    def waitvm(k):
        k = max(k, 0)
        if st["issued"] - k > st["landed"]:
            A(f"s_waitcnt vmcnt({k})")
            st["landed"] = st["issued"] - k
    def T(n): return T0 + (n & 31)
    def tree(e, lvl):
        a = T(e - (1 << lvl) + 1); b = T(e - (1 << (lvl - 1)) + 1)
        if lvl == 1:
            A(f"v_add_f32_dpp v{a}, v{a}, v{a} row_ror:8 row_mask:0xf bank_mask:0x3")
            A(f"v_add_f32_dpp v{a}, v{b}, v{b} row_ror:8 row_mask:0xf bank_mask:0xc")
        elif lvl == 2:
            A(f"v_add_f32_dpp v{a}, v{a}, v{a} row_shl:4 row_mask:0xf bank_mask:0x5")
            A(f"v_add_f32_dpp v{a}, v{b}, v{b} row_shr:4 row_mask:0xf bank_mask:0xa")
        else:
            qp = "[2,3,0,1]" if lvl == 3 else "[1,0,3,2]"
            m = "s[44:45]" if lvl == 3 else "s[46:47]"
            A(f"v_add_f32_dpp v{a}, v{a}, v{a} quad_perm:{qp} {DPPF}")
            A(f"v_add_f32_dpp v{b}, v{b}, v{b} quad_perm:{qp} {DPPF}")
            A(f"v_cndmask_b32 v{a}, v{a}, v{b}, {m}")
            if lvl == 4:
                k = e >> 4
                bf16r(TMP, a)
                A(f"v_mul_f32 v{TMP}, {f32(SCALE)}, v{TMP}")
                bf16r(S0 + k, TMP)
                if k == 0: A(f"v_mov_b32 v{TMP+1}, v{S0}")
                else: A(f"v_max_f32 v{TMP+1}, v{TMP+1}, v{S0+k}")
    def tree_at(n):
        for lvl in (4, 3, 2, 1):
            e = n - lvl
            if 0 <= e < NL and (e + 1) % (1 << lvl) == 0: tree(e, lvl)
    def consume():
        n = st["consumed"]
        assert n < st["landed"], (n, st)
        r = ring(n)
        if n < NL:
            t = T(n)
            A(f"v_dot2_f32_bf16 v{t}, v{r}, v{Q}, 0")
            for j in range(1, 4): A(f"v_dot2_f32_bf16 v{t}, v{r+j}, v{Q+j}, v{t}")
            tree_at(n)
        else:
            m = n - NL
            a = ASET[m % 3]
            c = "0" if m == 0 else f"v[{ACC}:{ACC+3}]"
            A(f"v_mfma_f32_16x16x32_bf16 v[{ACC}:{ACC+3}], v[{a}:{a+3}], v[{r}:{r+3}], {c}")
            if m + 2 < NL: buildA(ASET[(m + 2) % 3], S0 + ((m + 2) >> 4), brev4((m + 2) & 15))
        st["consumed"] += 1
    def win(n):
        return max(W, W0 - max(0, n - W0)) if n < 64 else W
    while st["issued"] < nB1:
        waitvm(win(st["issued"]) - 1); issue()
    stamp(2)
    A("s_barrier")
    stamp(3)
    A("v_lshlrev_b32 v5, 5, v3")
    for w in range(4):
        A(f"ds_read_b128 v[{T0+8*w}:{T0+8*w+3}], v5 offset:{L_Q + 512*w}")
        A(f"ds_read_b128 v[{T0+8*w+4}:{T0+8*w+7}], v5 offset:{L_Q + 512*w + 16}")
    for _ in range(2):
        waitvm(W - 1 + 2); issue()
    A("s_waitcnt lgkmcnt(0)")
    for j in range(8):
        A(f"v_add_f32 v{T0+j}, v{T0+j}, v{T0+8+j}")
        A(f"v_add_f32 v{T0+16+j}, v{T0+16+j}, v{T0+24+j}")
    for j in range(8):
        A(f"v_add_f32 v{T0+j}, v{T0+j}, v{T0+16+j}")
    for j in range(4):
        A(f"v_cvt_pk_bf16_f32 v{Q+j}, v{T0+2*j}, v{T0+2*j+1}")
    def step(limit):
        if st["issued"] < 2 * NL and st["issued"] - R < st["consumed"]:
            waitvm(W - 1); issue()
        else:
            waitvm(st["issued"] - st["consumed"] - 1)
        k = 0
        while k < rate and st["consumed"] < min(limit, st["landed"]):
            consume(); k += 1
    while st["consumed"] < NL:
        step(NL)
    for _ in range(burst2): issue()
    for n in range(NL, NL + 5): tree_at(n)
    stamp(4)
    MX, SUM, NM = TMP + 1, TMP + 2, TMP + 3
    wave_reduce("v_max_f32", MX, TMP)
    A(f"v_mul_f32 v{NM}, s93, v{MX}")
    for k in range(16):
        A(f"v_fma_f32 v{S0+k}, v{S0+k}, s93, -v{NM}")
    for k in range(16):
        A(f"v_exp_f32 v{S0+k}, v{S0+k}")
    for k in range(8):
        A(f"v_add_f32 v{T0+k}, v{S0+2*k}, v{S0+2*k+1}")
    for wd in (4, 2, 1):
        for k in range(wd):
            A(f"v_add_f32 v{T0+k}, v{T0+k}, v{T0+wd+k}")
    A(f"v_mov_b32 v{SUM}, v{T0}")
    wave_reduce("v_add_f32", SUM, TMP)
    A(f"v_mov_b32 v{T0}, v{MX}\nv_mov_b32 v{T0+1}, v{SUM}")
    A(f"s_lshl_b32 s48, s5, 3\nv_mov_b32 v5, s48")
    A("s_mov_b64 exec, 1")
    A(f"ds_write_b64 v5, v[{T0}:{T0+1}] offset:{L_SM}")
    A("s_mov_b64 exec, -1")
    A("v_mov_b32 v5, 0")
    A("s_waitcnt lgkmcnt(0)")
    A("s_barrier")
    A(f"ds_read_b128 v[{T0}:{T0+3}], v5 offset:{L_SM}")
    A(f"ds_read_b128 v[{T0+4}:{T0+7}], v5 offset:{L_SM+16}")
    stamp(5)
    waitvm(W - 1); issue()
    A("s_waitcnt lgkmcnt(0)")
    GM = T0 + 8
    A(f"v_max3_f32 v{GM}, v{T0}, v{T0+2}, v{T0+4}")
    A(f"v_max_f32 v{GM}, v{GM}, v{T0+6}")
    for i in range(4):
        A(f"v_sub_f32 v{T0+2*i}, v{T0+2*i}, v{GM}")
    A(f"v_sub_f32 v{MX}, v{MX}, v{GM}")
    for i in range(4):
        A(f"v_mul_f32 v{T0+2*i}, s93, v{T0+2*i}")
    A(f"v_mul_f32 v{MX}, s93, v{MX}")
    for i in range(4):
        A(f"v_exp_f32 v{T0+2*i}, v{T0+2*i}")
    A(f"v_exp_f32 v{MX}, v{MX}")
    A(f"v_mul_f32 v{SUM}, v{T0}, v{T0+1}")
    for i in range(1, 4):
        A(f"v_fma_f32 v{SUM}, v{T0+2*i}, v{T0+2*i+1}, v{SUM}")
    A(f"v_rcp_f32 v{NM}, v{SUM}")
    A(f"v_fma_f32 v{TMP}, -v{SUM}, v{NM}, 1.0")
    A(f"v_fma_f32 v{NM}, v{TMP}, v{NM}, v{NM}")
    A(f"v_mul_f32 v{NM}, v{NM}, v{MX}")
    for k in range(16):
        A(f"v_mul_f32 v{S0+k}, v{S0+k}, v{NM}")
    for k in range(16):
        A(f"v_cvt_pk_bf16_f32 v{S0+k}, v{S0+k}, v{S0+k}")
    buildA(ASET[0], S0, brev4(0)); buildA(ASET[1], S0, brev4(1))
    while st["consumed"] < 2 * NL:
        step(2 * NL)
    stamp(6)
    A("v_lshlrev_b32 v5, 5, v3")
    A("v_lshl_add_u32 v5, v4, 4, v5")
    A("s_lshl_b32 s48, s5, 9\nv_add_u32 v5, s48, v5")
    A("s_mov_b64 exec, 0xffffffff")
    A(f"ds_write_b128 v5, v[{ACC}:{ACC+3}] offset:{L_O}")
    A("s_waitcnt lgkmcnt(0)")
    A("s_barrier")
    stamp(7)
    ts_store(8)
    A("s_endpgm")

    A("L_helper:")
    A.fence(4)
    BUF = 96; DN = 40; X0, X1 = 28, 29
    A("s_sub_u32 s5, s5, 4")
    A("s_and_b32 s6, s3, 7\ns_lshl_b32 s6, s6, 2\ns_lshr_b32 s7, s3, 3\ns_add_u32 s6, s6, s7")
    A("s_lshl_b32 s7, s5, 7")
    A("v_lshl_add_u32 v5, v4, 5, s7")
    A("v_lshlrev_b32 v30, 13, v5")
    A("v_lshl_add_u32 v30, v3, 4, v30")
    A("v_lshlrev_b32 v31, 2, v2")
    A("s_lshl_b32 s48, s5, 8")
    A("v_add_u32 v31, s48, v31")
    A("v_mov_b32 v12, -1\nv_mov_b32 v13, -1\nv_mov_b32 v14, -1\nv_mov_b32 v15, -1")
    A(f"s_lshr_b32 s48, s5, 1\ns_mul_i32 s48, s48, {WS_Y}\ns_lshl_b32 s49, s2, 11\ns_add_u32 s48, s48, s49")
    A("s_and_b32 s49, s5, 1\ns_lshl_b32 s49, s49, 10\ns_add_u32 s48, s48, s49")
    A("v_lshl_add_u32 v32, v2, 4, s48")
    A("s_waitcnt lgkmcnt(0)")
    stamp(1)
    def srd(d, p, off_s, size):
        if off_s is None:
            A(f"s_mov_b32 s{d}, s{p}\ns_and_b32 s{d+1}, s{p+1}, 0xffff")
        else:
            A(f"s_add_u32 s{d}, s{p}, {off_s}\ns_addc_u32 s{d+1}, s{p+1}, 0\ns_and_b32 s{d+1}, s{d+1}, 0xffff")
        A(f"s_mov_b32 s{d+2}, {size}\ns_mov_b32 s{d+3}, 0x00020000")
    S_WQ, S_X, S_WS, S_G, S_U, S_D, S_WO, S_OUT = 8, 12, 44, 48, 52, 56, 60, 64
    srd(S_WS, 42, None, 16 << 20)
    A("s_lshl_b32 s7, s4, 10"); srd(S_X, 16, "s7", 1024)
    A(f"s_lshl_b32 s7, s3, 8\ns_sub_u32 s94, {512*8192}, s7"); srd(S_WQ, 22, "s7", "s94")
    vm = dict(n=0)
    def V(text): A(text); vm["n"] += 1; return vm["n"] - 1
    def wait_idx(i): A(f"s_waitcnt vmcnt({min(63, vm['n'] - 1 - i)})")
    A("s_nop 0")
    ix = V(f"buffer_load_dword v33, v31, s[{S_X}:{S_X+3}], 0 offen")
    iw = []
    for j in range(32):
        if j: A(f"s_mov_b32 s7, {j*8192}")
        iw.append(V(f"buffer_load_dwordx4 v[{BUF+4*j}:{BUF+4*j+3}], v30, s[{S_WQ}:{S_WQ+3}], {'s7' if j else '0'} offen {wflag}"))
    V(f"buffer_store_dwordx4 v[12:15], v32, s[{S_WS}:{S_WS+3}], 0 offen sc1")
    A(f"s_mul_i32 s7, s6, 112\ns_sub_u32 s94, {512*3584}, s7"); srd(S_G, 30, "s7", "s94"); srd(S_U, 32, "s7", "s94")
    A(f"s_mul_i32 s7, s6, {56*1024}"); srd(S_D, 34, "s7", 56 * 1024)
    A("s_lshl_b32 s7, s3, 17"); srd(S_WO, 24, "s7", 128 * 1024)
    srd(S_OUT, 38, None, 8192)
    S_GW, S_WR, S_DBG = 68, 72, 36
    srd(S_GW, 36, None, 1024); srd(S_WR, 28, None, 1024); srd(S_DBG, 40, None, 256)
    wait_idx(ix)
    A(f"v_and_b32 v34, 0xffff, v33\nv_lshl_or_b32 v{X0}, v34, 16, v34")
    A(f"v_lshrrev_b32 v34, 16, v33\nv_lshl_or_b32 v{X1}, v34, 16, v34")
    def gemv(acc, nload, src_of, buf_of, wait_of=None):
        for j in range(min(2, nload)): buildA(ASET[j % 3], *src_of(j))
        for j in range(nload):
            if wait_of: wait_of(j)
            a = ASET[j % 3]; r = buf_of(j)
            c = "0" if j == 0 else f"v[{acc}:{acc+3}]"
            A(f"v_mfma_f32_16x16x32_bf16 v[{acc}:{acc+3}], v[{a}:{a+3}], v[{r}:{r+3}], {c}")
            if j + 2 < nload: buildA(ASET[(j + 2) % 3], *src_of(j + 2))
    xsrc = lambda j: ((X0, X1)[j & 1], j >> 1)
    gemv(36, 32, xsrc, lambda j: BUF + 4 * j, lambda j: wait_idx(iw[j]))
    A("v_lshlrev_b32 v35, 5, v3\nv_lshl_add_u32 v35, v4, 4, v35\ns_lshl_b32 s7, s5, 9\nv_add_u32 v35, s7, v35")
    A("s_mov_b64 exec, 0xffffffff")
    A(f"ds_write_b128 v35, v[36:39] offset:{L_Q}")
    A("s_mov_b64 exec, -1")
    A("s_waitcnt vmcnt(0) lgkmcnt(0)")
    stamp(2)
    A("s_barrier")
    A("s_cmp_lg_u32 s5, 0\ns_cbranch_scc1 L_nosig")
    A("s_lshl_b32 s7, s4, 5\nv_mov_b32 v33, s7\nv_mov_b32 v34, 1")
    A("s_mov_b64 exec, 1")
    A(f"buffer_atomic_add v34, v33, s[{S_DBG}:{S_DBG+3}], 0 offen sc1")
    A("s_mov_b64 exec, -1")
    A("s_waitcnt vmcnt(0)")
    A("L_nosig:")
    A.fence(2)
    vm["n"] = 0
    A("s_movk_i32 s7, 3584\nv_mul_lo_u32 v30, v5, s7")
    A("v_and_b32 v33, 7, v3\nv_lshl_add_u32 v30, v33, 4, v30")
    def paced(text):
        if vm["n"] >= hwin: A(f"s_waitcnt vmcnt({hwin-1})")
        return V(text)
    for (sr, mask) in ((S_G, 0x007f007f), (S_U, 0x7f007f00)):
        A(f"s_mov_b32 exec_lo, {mask:#x}\ns_mov_b32 exec_hi, {mask:#x}")
        for j in range(32):
            if j: A(f"s_mov_b32 s7, {j*3584}")
            paced(f"buffer_load_dwordx4 v[{BUF+4*j}:{BUF+4*j+3}], v30, s[{sr}:{sr+3}], {'s7' if j else '0'} offen {wflag}")
    A("s_mov_b64 exec, -1")
    A("s_movk_i32 s7, 14336\nv_mul_lo_u32 v31, v4, s7\nv_lshl_add_u32 v31, v3, 4, v31\ns_lshl_b32 s7, s5, 8\nv_add_u32 v31, s7, v31")
    igu = vm["n"] - 1
    for t in range(14):
        if t: A(f"s_mov_b32 s7, {t*1024}")
        paced(f"buffer_load_dwordx4 v[{DN+4*t}:{DN+4*t+3}], v31, s[{S_D}:{S_D+3}], {'s7' if t else '0'} offen {wflag}")
    A("v_lshlrev_b32 v33, 4, v2")
    paced(f"buffer_load_dwordx4 v[224:227], v33, s[{S_X}:{S_X+3}], 0 offen")
    paced(f"buffer_load_dwordx4 v[228:231], v33, s[{S_GW}:{S_GW+3}], 0 offen")
    paced(f"buffer_load_dwordx4 v[232:235], v33, s[{S_WR}:{S_WR+3}], 0 offen")
    A("v_and_b32 v33, 1, v4\nv_lshlrev_b32 v33, 1, v33\nv_lshrrev_b32 v34, 1, v4\nv_or_b32 v33, v33, v34")
    A("v_and_b32 v34, 3, v2\nv_lshl_add_u32 v33, v34, 2, v33\ns_lshl_b32 s7, s3, 4\nv_add_u32 v33, s7, v33")
    A("v_lshlrev_b32 v236, 1, v33")
    paced(f"buffer_load_ushort v237, v236, s[{S_X}:{S_X+3}], 0 offen")
    wait_idx(igu)
    gemv(36, 32, xsrc, lambda j: BUF + 4 * j)
    A("s_mov_b64 exec, 0xffffffff")
    A(f"ds_write_b128 v35, v[36:39] offset:{L_GU}")
    A("s_mov_b64 exec, -1")
    A("s_waitcnt vmcnt(0)")
    G, RS, XC = 238, 239, 237
    for j in range(4):
        A(f"v_lshlrev_b32 v240, 16, v{224+j}\nv_and_b32 v241, s92, v{224+j}")
        A(f"v_lshlrev_b32 v242, 16, v{228+j}\nv_and_b32 v243, s92, v{228+j}")
        A("v_mul_f32 v240, v240, v242\nv_mul_f32 v241, v241, v243")
        A("v_cvt_pk_bf16_f32 v240, v240, v241")
        A("v_and_b32 v241, s92, v240\nv_lshlrev_b32 v240, 16, v240")
        if j == 0: A(f"v_add_f32 v{G}, v240, v241")
        else: A(f"v_add_f32 v{G}, v{G}, v240\nv_add_f32 v{G}, v{G}, v241")
    A(f"v_dot2_f32_bf16 v{RS}, v224, v232, 0")
    for j in range(1, 4): A(f"v_dot2_f32_bf16 v{RS}, v{224+j}, v{232+j}, v{RS}")
    wave_reduce("v_add_f32", G, 240)
    wave_reduce("v_add_f32", RS, 240)
    def sigmoid(d):
        bf16r(d, d)
        A(f"v_mul_f32 v{d}, {f32(-LOG2E)}, v{d}")
        A(f"v_exp_f32 v{d}, v{d}")
        A(f"v_add_f32 v{d}, 1.0, v{d}")
        A(f"v_rcp_f32 v{d}, v{d}")
        bf16r(d, d)
    sigmoid(G); sigmoid(RS)
    A(f"v_lshlrev_b32 v{XC}, 16, v{XC}")
    A("s_waitcnt lgkmcnt(0)")
    stamp(3)
    A("s_barrier")
    stamp(4)
    A("v_mul_u32_u24 v33, 14, v4\nv_add_u32 v33, v33, v3\nv_lshlrev_b32 v33, 2, v33")
    for w in range(4):
        A(f"ds_read2_b32 v[{240+2*w}:{241+2*w}], v33 offset0:{(L_GU + 512*w)//4 - 512} offset1:{(L_GU + 512*w)//4 + 64 - 512}") if False else None
    A(f"v_add_u32 v34, {L_GU}, v33")
    for w in range(4):
        if w == 2: A("v_add_u32 v34, 1024, v34")
        o0 = (w & 1) * 128
        A(f"ds_read2_b32 v[{240+2*w}:{241+2*w}], v34 offset0:{o0} offset1:{o0+64}")
    A("s_lshl_b32 s7, s4, 5\nv_mov_b32 v33, s7")
    A(f"s_mov_b32 s95, {spin}")
    A("L_pollc:")
    A(f"buffer_load_dword v34, v33, s[{S_DBG}:{S_DBG+3}], 0 offen sc1")
    A("s_waitcnt vmcnt(0)")
    A("v_readfirstlane_b32 s7, v34")
    A("s_sub_u32 s95, s95, 1")
    A("s_cmp_eq_u32 s95, 0\ns_cbranch_scc1 L_pollc_done")
    A("s_cmp_ge_u32 s7, 32\ns_cbranch_scc1 L_pollc_done")
    A("s_sleep 8\ns_branch L_pollc")
    A("L_pollc_done:")
    A.fence(2)
    vm["n"] = 0
    A("s_waitcnt lgkmcnt(0)")
    A("v_add_f32 v240, v240, v242\nv_add_f32 v244, v244, v246\nv_add_f32 v241, v241, v243\nv_add_f32 v245, v245, v247")
    A("v_add_f32 v240, v240, v244\nv_add_f32 v241, v241, v245")
    bf16r(240, 240); bf16r(241, 241)
    A(f"v_mul_f32 v242, {f32(-LOG2E)}, v240\nv_exp_f32 v242, v242\nv_add_f32 v242, 1.0, v242\nv_rcp_f32 v242, v242")
    A("v_mul_f32 v242, v240, v242")
    bf16r(242, 242)
    A("v_mul_f32 v242, v242, v241")
    A("v_cvt_pk_bf16_f32 v242, v242, v242")
    gemv(36, 14, lambda t: (242, t), lambda t: DN + 4 * t)
    A("v_lshrrev_b32 v32, 1, v3\nv_lshlrev_b32 v32, 11, v32\nv_and_b32 v33, 1, v3\nv_lshl_add_u32 v32, v33, 5, v32\nv_lshl_add_u32 v32, v4, 4, v32")
    A("s_lshl_b32 s7, s4, 16\ns_lshl_b32 s94, s5, 14\ns_add_u32 s7, s7, s94\ns_lshl_b32 s94, s3, 6\ns_add_u32 s7, s7, s94\nv_add_u32 v32, s7, v32")
    for r in range(4): A(f"v_min_u32 v{36+r}, -2, v{36+r}")
    A(f"s_mov_b32 s94, {WS_Y}")
    A("s_mov_b64 exec, 0xffffffff")
    V(f"buffer_store_dwordx4 v[36:39], v32, s[{S_WS}:{S_WS+3}], s94 offen sc1")
    A("s_mov_b64 exec, -1")
    A("v_lshlrev_b32 v31, 15, v4\nv_lshl_add_u32 v31, v3, 4, v31\ns_lshl_b32 s7, s5, 8\nv_add_u32 v31, s7, v31")
    for j in range(32):
        if j: A(f"s_mov_b32 s7, {j*1024}")
        paced(f"buffer_load_dwordx4 v[{BUF+4*j}:{BUF+4*j+3}], v31, s[{S_WO}:{S_WO+3}], {'s7' if j else '0'} offen {wflag}")
    A("s_lshl_b32 s7, s2, 11\nv_lshl_add_u32 v30, v2, 4, s7")
    def poll_reduce(name, soff_val, dst):
        A(f"s_mov_b32 s94, {soff_val}\ns_mov_b32 s95, {spin}")
        A(f"L_poll{name}:")
        A(f"buffer_load_dwordx4 v[40:43], v30, s[{S_WS}:{S_WS+3}], s94 offen sc1")
        A(f"buffer_load_dwordx4 v[44:47], v30, s[{S_WS}:{S_WS+3}], s94 offen offset:1024 sc1")
        A("s_waitcnt vmcnt(0)")
        A("v_max3_u32 v48, v40, v41, v42\nv_max3_u32 v49, v43, v44, v45\nv_max3_u32 v48, v48, v46, v47\nv_max_u32 v48, v48, v49")
        A("v_cmp_eq_u32 vcc, -1, v48")
        A("s_sub_u32 s95, s95, 1")
        A(f"s_cmp_eq_u32 s95, 0\ns_cbranch_scc1 L_poll{name}_done")
        A(f"s_cbranch_vccz L_poll{name}_done")
        A(f"s_sleep 2\ns_branch L_poll{name}")
        A(f"L_poll{name}_done:")
        for r in range(4): A(f"v_add_f32 v{40+r}, v{40+r}, v{44+r}")
        A("v_permlane32_swap_b32 v40, v41\nv_permlane32_swap_b32 v42, v43")
        A("v_add_f32 v40, v40, v41\nv_add_f32 v42, v42, v43")
        A("v_permlane16_swap_b32 v40, v42")
        A(f"v_add_f32 v{dst}, v40, v42")
        A(f"v_add_f32_dpp v{dst}, v{dst}, v{dst} row_ror:4 {DPPF}")
        A(f"v_add_f32_dpp v{dst}, v{dst}, v{dst} row_ror:8 {DPPF}")
    A("s_cmp_lg_u32 s5, 0\ns_cbranch_scc1 L_noy")
    poll_reduce("y", WS_Y, 240)
    bf16r(240, 240)
    A(f"v_mul_f32 v240, v240, v{RS}"); bf16r(240, 240)
    A(f"v_add_f32 v240, v{XC}, v240"); bf16r(240, 240)
    A(f"v_sub_f32 v241, 1.0, v{G}"); bf16r(241, 241)
    A("v_mul_f32 v240, v241, v240"); bf16r(240, 240)
    A("s_lshl_b32 s7, s4, 10\nv_add_u32 v236, s7, v236")
    A("L_noy:")
    A("v_lshlrev_b32 v33, 3, v2")
    A("s_waitcnt vmcnt(0)")
    stamp(5)
    A("s_barrier")
    for w in range(4):
        A(f"ds_read_b64 v[{244+2*w}:{245+2*w}], v33 offset:{L_O + 512*w}")
    stamp(6)
    A("s_waitcnt lgkmcnt(0)")
    A("v_add_f32 v244, v244, v246\nv_add_f32 v248, v248, v250\nv_add_f32 v245, v245, v247\nv_add_f32 v249, v249, v251")
    A("v_add_f32 v244, v244, v248\nv_add_f32 v245, v245, v249")
    A(f"v_cvt_pk_bf16_f32 v{X0}, v244, v244\nv_cvt_pk_bf16_f32 v{X1}, v245, v245")
    gemv(36, 32, xsrc, lambda j: BUF + 4 * j)
    for r in range(4): A(f"v_min_u32 v{36+r}, -2, v{36+r}")
    A("s_mov_b64 exec, 0xffffffff")
    A(f"buffer_store_dwordx4 v[36:39], v32, s[{S_WS}:{S_WS+3}], 0 offen sc1")
    A("s_mov_b64 exec, -1")
    A("s_cmp_lg_u32 s5, 0\ns_cbranch_scc1 L_hend")
    poll_reduce("a", WS_A, 241)
    bf16r(241, 241)
    A(f"v_mul_f32 v241, v{G}, v241"); bf16r(241, 241)
    A("v_add_f32 v241, v241, v240")
    A("v_cvt_pk_bf16_f32 v241, v241, v241")
    A("s_mov_b32 exec_lo, 0x000f000f\ns_mov_b32 exec_hi, 0x000f000f")
    A(f"buffer_store_short v241, v236, s[{S_OUT}:{S_OUT+3}], 0 offen")
    A("L_hend:")
    if ts:
        A("s_waitcnt vmcnt(0)")
        stamp(7)
        A("s_add_u32 s5, s5, 4")
        ts_store(8)
    A("L_done:\ns_endpgm")
    A.raw(f'''.section .rodata,"a"
.p2align 6
.amdhsa_kernel {KN}
  .amdhsa_next_free_vgpr 256
  .amdhsa_next_free_sgpr 102
  .amdhsa_accum_offset 256
  .amdhsa_group_segment_fixed_size 0
  .amdhsa_kernarg_size 112
  .amdhsa_user_sgpr_count 2
  .amdhsa_user_sgpr_kernarg_segment_ptr 1
  .amdhsa_system_sgpr_workgroup_id_x 1
  .amdhsa_float_denorm_mode_32 3
.end_amdhsa_kernel''')
    return A.text(), A

if __name__ == "__main__":
    import argparse
    ap = argparse.ArgumentParser()
    ap.add_argument("-o", default="main.s")
    ap.add_argument("kv", nargs="*")
    a = ap.parse_args()
    kw = {}
    for s in a.kv:
        k, v = s.split("=")
        try: v = int(v)
        except ValueError: pass
        kw[k] = v
    txt, A = gen(**kw)
    open(a.o, "w").write(txt)
    print(a.o, "lines", len(A.lines), "auto-nops", A.nops)
```

```python
import sys, struct
from asmlib import Asm
KN = "gated_mix__mha_block_cached__moe_arch_mod__decode_kernel"
HDR = open("gated_mix__mha_block_cached__moe_arch_mod__decode.s.ref").read().split("; Override launch")[0] if False else ""

def f32(x): return "0x%08x" % struct.unpack("<I", struct.pack("<f", x))[0]
LOG2E = 1.4426950408889634
SCALE = 128 ** -0.5
DPPF = "row_mask:0xf bank_mask:0xf"
def brev4(n): return ((n & 1) << 3) | ((n & 2) << 1) | ((n & 4) >> 1) | ((n & 8) >> 3)

L_Q, L_GU, L_SM, L_O = 0, 2048, 4096, 4608
LDS_BYTES = 8192
WS_A, WS_Y, WS_TS = 0, 1 << 20, 4 << 20

def gen(W=5, R=40, W0=12, nB1=30, rate=2, burst2=4, hwin=6, wflag="", ts=False, kvflag="nt", prio=True, spin=1 << 22):
    A = Asm()
    A.raw(f"; @launch grid=(256,1,1) block=(512,1,1) lds={LDS_BYTES}")
    A.raw('.amdgcn_target "amdgcn-amd-amdhsa--gfx950"')
    A.raw(f".text\n.globl {KN}\n.p2align 8\n.type {KN},@function\n{KN}:")
    tsn = [0]
    def stamp(i):
        if ts: A(f"s_memrealtime s[{64+2*i}:{65+2*i}]") if False else A(f"s_memrealtime s[{TSB+2*i}:{TSB+1+2*i}]")
    TSB = 76
    A("s_cmp_ge_u32 s2, 256\ns_cbranch_scc1 L_done")
    stamp(0)
    A("s_load_dwordx16 s[16:31], s[0:1], 0")
    A("s_load_dwordx8 s[32:39], s[0:1], 64")
    A("s_load_dwordx4 s[40:43], s[0:1], 96")
    if hmap == 0:
        A("s_and_b32 s3, s2, 31")
        A("s_lshr_b32 s4, s2, 5")
    elif hmap == 1:
        A("s_and_b32 s3, s2, 7\ns_lshl_b32 s3, s3, 2\ns_bfe_u32 s4, s2, 0x20003\ns_or_b32 s3, s3, s4\ns_lshr_b32 s4, s2, 5")
    elif hmap == 2:
        A("s_bfe_u32 s3, s2, 0x20001\ns_lshl_b32 s3, s3, 3\ns_bfe_u32 s4, s2, 0x30003\ns_or_b32 s3, s3, s4")
        A("s_and_b32 s4, s2, 1\ns_lshl_b32 s4, s4, 2\ns_lshr_b32 s6, s2, 6\ns_or_b32 s4, s4, s6")
    elif hmap == 3:
        A("s_bfe_u32 s3, s2, 0x10002\ns_lshl_b32 s3, s3, 4\ns_bfe_u32 s4, s2, 0x40003\ns_or_b32 s3, s3, s4")
        A("s_and_b32 s4, s2, 3\ns_lshl_b32 s4, s4, 1\ns_lshr_b32 s6, s2, 7\ns_or_b32 s4, s4, s6")
    elif hmap == 4:
        A("s_lshr_b32 s3, s2, 3\ns_and_b32 s4, s2, 7")
    if ts: A("s_mov_b32 s100, s2")
    A("s_lshl_b32 s2, s4, 5\ns_or_b32 s2, s2, s3")
    A("v_lshrrev_b32 v1, 6, v0")
    A("v_and_b32 v2, 63, v0")
    A("v_readfirstlane_b32 s5, v1")
    A("v_and_b32 v3, 15, v2")
    A("v_lshrrev_b32 v4, 4, v2")
    A("v_mov_b32 v10, 0xffff")
    A("v_mov_b32 v11, 0xffff0000")
    for r in range(4):
        A(f"v_cmp_eq_u32 vcc, {2*r}, v3")
        A(f"v_cndmask_b32 v{6+r}, 0, v10, vcc")
        A(f"v_cmp_eq_u32 vcc, {2*r+1}, v3")
        A(f"v_cndmask_b32 v{6+r}, v{6+r}, v11, vcc")
    A("s_mov_b32 s92, 0xffff0000")
    A(f"s_mov_b32 s93, {f32(LOG2E)}")
    A("s_cmp_ge_u32 s5, 4\ns_cbranch_scc1 L_helper")

    def bf16r(d, s):
        A(f"v_cvt_pk_bf16_f32 v{d}, v{s}, v{s}")
        A(f"v_and_b32 v{d}, s92, v{d}")
    def wave_reduce(op, v, t):
        for d in (8, 4, 2, 1):
            A(f"{op}_dpp v{v}, v{v}, v{v} row_ror:{d} {DPPF}")
        for p in ("v_permlane16_swap_b32", "v_permlane32_swap_b32"):
            A(f"v_mov_b32 v{t}, v{v}")
            A(f"{p} v{v}, v{t}")
            A(f"{op} v{v}, v{v}, v{t}")
    def buildA(aset, src, lane):
        for r in range(4):
            A(f"v_and_b32_dpp v{aset+r}, v{src}, v{6+r} row_newbcast:{lane} {DPPF}")
    def ts_store(nst):
        if not ts: return
        A("s_getreg_b32 s94, hwreg(HW_REG_XCC_ID)")
        A("s_waitcnt lgkmcnt(0)")
        A("s_lshl_b32 s95, s100, 3\ns_add_u32 s95, s95, s5\ns_lshl_b32 s95, s95, 6")
        A(f"s_add_u32 s95, s95, {WS_TS}")
        A("s_mov_b32 s96, s42\ns_and_b32 s97, s43, 0xffff\ns_mov_b32 s98, 0x1000000\ns_mov_b32 s99, 0x00020000")
        A("s_mov_b64 exec, 1")
        A("v_mov_b32 v1, s95")
        for i in range(8):
            A(f"v_mov_b32 v{16+i}, s{TSB+2*i}")
        A("v_mov_b32 v24, s94")
        A("buffer_store_dwordx4 v[16:19], v1, s[96:99], 0 offen")
        A("buffer_store_dwordx4 v[20:23], v1, s[96:99], 0 offen offset:16")
        A("buffer_store_dword v24, v1, s[96:99], 0 offen offset:32")
        A("s_waitcnt vmcnt(0)")

    ASET = [16, 20, 24]; ACC = 12; Q = 28; T0 = 32; S0 = 64; TMP = 80; RING = 96
    assert RING + 4 * R <= 256
    if prio: A("s_setprio 3")
    A("v_lshlrev_b32 v1, 12, v1")
    A("v_lshl_add_u32 v1, v2, 4, v1")
    A("s_lshl_b32 s6, s2, 20")
    A("s_mov_b32 s44, 0xcccccccc\ns_mov_b32 s45, 0xcccccccc\ns_mov_b32 s46, 0xaaaaaaaa\ns_mov_b32 s47, 0xaaaaaaaa")
    A("s_waitcnt lgkmcnt(0)")
    stamp(1)
    A("s_add_u32 s8, s18, s6\ns_addc_u32 s9, s19, 0\ns_and_b32 s9, s9, 0xffff\ns_mov_b32 s10, 0x100000\ns_mov_b32 s11, 0x00020000")
    A("s_add_u32 s12, s20, s6\ns_addc_u32 s13, s21, 0\ns_and_b32 s13, s13, 0xffff\ns_mov_b32 s14, 0x100000\ns_mov_b32 s15, 0x00020000")
    A("s_mov_b32 s7, 0")
    NL = 256
    st = dict(issued=0, consumed=0, landed=0)
    def ring(n): return RING + 4 * (n % R)
    def issue():
        n = st["issued"]
        assert n - R < st["consumed"], (n, st)
        srd = 8 if n < NL else 12
        if n == NL: A("s_mov_b32 s7, 0")
        r = ring(n)
        A(f"buffer_load_dwordx4 v[{r}:{r+3}], v1, s[{srd}:{srd+3}], s7 offen offset:{(n & 3) * 1024} {kvflag}")
        if n & 3 == 3 and n != NL - 1 and n != 2 * NL - 1: A("s_add_u32 s7, s7, 0x4000")
        st["issued"] += 1
    def waitvm(k):
        k = max(k, 0)
        if st["issued"] - k > st["landed"]:
            A(f"s_waitcnt vmcnt({k})")
            st["landed"] = st["issued"] - k
    def T(n): return T0 + (n & 31)
    def tree(e, lvl):
        a = T(e - (1 << lvl) + 1); b = T(e - (1 << (lvl - 1)) + 1)
        if lvl == 1:
            A(f"v_add_f32_dpp v{a}, v{a}, v{a} row_ror:8 row_mask:0xf bank_mask:0x3")
            A(f"v_add_f32_dpp v{a}, v{b}, v{b} row_ror:8 row_mask:0xf bank_mask:0xc")
        elif lvl == 2:
            A(f"v_add_f32_dpp v{a}, v{a}, v{a} row_shl:4 row_mask:0xf bank_mask:0x5")
            A(f"v_add_f32_dpp v{a}, v{b}, v{b} row_shr:4 row_mask:0xf bank_mask:0xa")
        else:
            qp = "[2,3,0,1]" if lvl == 3 else "[1,0,3,2]"
            m = "s[44:45]" if lvl == 3 else "s[46:47]"
            A(f"v_add_f32_dpp v{a}, v{a}, v{a} quad_perm:{qp} {DPPF}")
            A(f"v_add_f32_dpp v{b}, v{b}, v{b} quad_perm:{qp} {DPPF}")
            A(f"v_cndmask_b32 v{a}, v{a}, v{b}, {m}")
            if lvl == 4:
                k = e >> 4
                bf16r(TMP, a)
                A(f"v_mul_f32 v{TMP}, {f32(SCALE)}, v{TMP}")
                bf16r(S0 + k, TMP)
                if k == 0: A(f"v_mov_b32 v{TMP+1}, v{S0}")
                else: A(f"v_max_f32 v{TMP+1}, v{TMP+1}, v{S0+k}")
    def tree_at(n):
        for lvl in (4, 3, 2, 1):
            e = n - lvl
            if 0 <= e < NL and (e + 1) % (1 << lvl) == 0: tree(e, lvl)
    def consume():
        n = st["consumed"]
        assert n < st["landed"], (n, st)
        r = ring(n)
        if n < NL:
            t = T(n)
            A(f"v_dot2_f32_bf16 v{t}, v{r}, v{Q}, 0")
            for j in range(1, 4): A(f"v_dot2_f32_bf16 v{t}, v{r+j}, v{Q+j}, v{t}")
            tree_at(n)
        else:
            m = n - NL
            a = ASET[m % 3]
            c = "0" if m == 0 else f"v[{ACC}:{ACC+3}]"
            A(f"v_mfma_f32_16x16x32_bf16 v[{ACC}:{ACC+3}], v[{a}:{a+3}], v[{r}:{r+3}], {c}")
            if m + 2 < NL: buildA(ASET[(m + 2) % 3], S0 + ((m + 2) >> 4), brev4((m + 2) & 15))
        st["consumed"] += 1
    def win(n):
        return max(W, W0 - max(0, n - W0)) if n < 64 else W
    while st["issued"] < nB1:
        waitvm(win(st["issued"]) - 1); issue()
    stamp(2)
    A("s_barrier")
    stamp(3)
    A("v_lshlrev_b32 v5, 5, v3")
    for w in range(4):
        A(f"ds_read_b128 v[{T0+8*w}:{T0+8*w+3}], v5 offset:{L_Q + 512*w}")
        A(f"ds_read_b128 v[{T0+8*w+4}:{T0+8*w+7}], v5 offset:{L_Q + 512*w + 16}")
    for _ in range(2):
        waitvm(W - 1 + 2); issue()
    A("s_waitcnt lgkmcnt(0)")
    for j in range(8):
        A(f"v_add_f32 v{T0+j}, v{T0+j}, v{T0+8+j}")
        A(f"v_add_f32 v{T0+16+j}, v{T0+16+j}, v{T0+24+j}")
    for j in range(8):
        A(f"v_add_f32 v{T0+j}, v{T0+j}, v{T0+16+j}")
    for j in range(4):
        A(f"v_cvt_pk_bf16_f32 v{Q+j}, v{T0+2*j}, v{T0+2*j+1}")
    def step(limit):
        if st["issued"] < 2 * NL and st["issued"] - R < st["consumed"]:
            waitvm(W - 1); issue()
        else:
            waitvm(st["issued"] - st["consumed"] - 1)
        k = 0
        while k < rate and st["consumed"] < min(limit, st["landed"]):
            consume(); k += 1
    while st["consumed"] < NL:
        step(NL)
    for _ in range(burst2): issue()
    for n in range(NL, NL + 5): tree_at(n)
    stamp(4)
    MX, SUM, NM = TMP + 1, TMP + 2, TMP + 3
    wave_reduce("v_max_f32", MX, TMP)
    A(f"v_mul_f32 v{NM}, s93, v{MX}")
    for k in range(16):
        A(f"v_fma_f32 v{S0+k}, v{S0+k}, s93, -v{NM}")
    for k in range(16):
        A(f"v_exp_f32 v{S0+k}, v{S0+k}")
    for k in range(8):
        A(f"v_add_f32 v{T0+k}, v{S0+2*k}, v{S0+2*k+1}")
    for wd in (4, 2, 1):
        for k in range(wd):
            A(f"v_add_f32 v{T0+k}, v{T0+k}, v{T0+wd+k}")
    A(f"v_mov_b32 v{SUM}, v{T0}")
    wave_reduce("v_add_f32", SUM, TMP)
    A(f"v_mov_b32 v{T0}, v{MX}\nv_mov_b32 v{T0+1}, v{SUM}")
    A(f"s_lshl_b32 s48, s5, 3\nv_mov_b32 v5, s48")
    A("s_mov_b64 exec, 1")
    A(f"ds_write_b64 v5, v[{T0}:{T0+1}] offset:{L_SM}")
    A("s_mov_b64 exec, -1")
    A("v_mov_b32 v5, 0")
    A("s_waitcnt lgkmcnt(0)")
    A("s_barrier")
    A(f"ds_read_b128 v[{T0}:{T0+3}], v5 offset:{L_SM}")
    A(f"ds_read_b128 v[{T0+4}:{T0+7}], v5 offset:{L_SM+16}")
    stamp(5)
    waitvm(W - 1); issue()
    A("s_waitcnt lgkmcnt(0)")
    GM = T0 + 8
    A(f"v_max3_f32 v{GM}, v{T0}, v{T0+2}, v{T0+4}")
    A(f"v_max_f32 v{GM}, v{GM}, v{T0+6}")
    for i in range(4):
        A(f"v_sub_f32 v{T0+2*i}, v{T0+2*i}, v{GM}")
    A(f"v_sub_f32 v{MX}, v{MX}, v{GM}")
    for i in range(4):
        A(f"v_mul_f32 v{T0+2*i}, s93, v{T0+2*i}")
    A(f"v_mul_f32 v{MX}, s93, v{MX}")
    for i in range(4):
        A(f"v_exp_f32 v{T0+2*i}, v{T0+2*i}")
    A(f"v_exp_f32 v{MX}, v{MX}")
    A(f"v_mul_f32 v{SUM}, v{T0}, v{T0+1}")
    for i in range(1, 4):
        A(f"v_fma_f32 v{SUM}, v{T0+2*i}, v{T0+2*i+1}, v{SUM}")
    A(f"v_rcp_f32 v{NM}, v{SUM}")
    A(f"v_fma_f32 v{TMP}, -v{SUM}, v{NM}, 1.0")
    A(f"v_fma_f32 v{NM}, v{TMP}, v{NM}, v{NM}")
    A(f"v_mul_f32 v{NM}, v{NM}, v{MX}")
    for k in range(16):
        A(f"v_mul_f32 v{S0+k}, v{S0+k}, v{NM}")
    for k in range(16):
        A(f"v_cvt_pk_bf16_f32 v{S0+k}, v{S0+k}, v{S0+k}")
    buildA(ASET[0], S0, brev4(0)); buildA(ASET[1], S0, brev4(1))
    while st["consumed"] < 2 * NL:
        step(2 * NL)
    stamp(6)
    A("v_lshlrev_b32 v5, 5, v3")
    A("v_lshl_add_u32 v5, v4, 4, v5")
    A("s_lshl_b32 s48, s5, 9\nv_add_u32 v5, s48, v5")
    A("s_mov_b32 exec_hi, 0")
    A(f"ds_write_b128 v5, v[{ACC}:{ACC+3}] offset:{L_O}")
    A("s_waitcnt lgkmcnt(0)")
    A("s_barrier")
    stamp(7)
    ts_store(8)
    A("s_endpgm")

    A("L_helper:")
    A.fence(4)
    BUF = 96; DN = 40; X0, X1 = 28, 29
    A("s_sub_u32 s5, s5, 4")
    if hmap == 0: A("s_and_b32 s6, s3, 7\ns_lshl_b32 s6, s6, 2\ns_lshr_b32 s7, s3, 3\ns_add_u32 s6, s6, s7")
    else: A("s_mov_b32 s6, s3")
    A("s_lshl_b32 s7, s5, 7")
    A("v_lshl_add_u32 v5, v4, 5, s7")
    A("v_lshlrev_b32 v30, 13, v5")
    A("v_lshl_add_u32 v30, v3, 4, v30")
    A("v_lshlrev_b32 v31, 2, v2")
    A("s_lshl_b32 s48, s5, 8")
    A("v_add_u32 v31, s48, v31")
    A("v_mov_b32 v12, -1\nv_mov_b32 v13, -1\nv_mov_b32 v14, -1\nv_mov_b32 v15, -1")
    A(f"s_lshr_b32 s48, s5, 1\ns_mul_i32 s48, s48, {WS_Y}\ns_lshl_b32 s49, s2, 11\ns_add_u32 s48, s48, s49")
    A("s_and_b32 s49, s5, 1\ns_lshl_b32 s49, s49, 10\ns_add_u32 s48, s48, s49")
    A("v_lshl_add_u32 v32, v2, 4, s48")
    A("s_waitcnt lgkmcnt(0)")
    stamp(1)
    def srd(d, p, off_s, size):
        if off_s is None:
            A(f"s_mov_b32 s{d}, s{p}\ns_and_b32 s{d+1}, s{p+1}, 0xffff")
        else:
            A(f"s_add_u32 s{d}, s{p}, {off_s}\ns_addc_u32 s{d+1}, s{p+1}, 0\ns_and_b32 s{d+1}, s{d+1}, 0xffff")
        A(f"s_mov_b32 s{d+2}, {size}\ns_mov_b32 s{d+3}, 0x00020000")
    S_WQ, S_X, S_WS, S_G, S_U, S_D, S_WO, S_OUT = 8, 12, 44, 48, 52, 56, 60, 64
    srd(S_WS, 42, None, 16 << 20)
    A("s_lshl_b32 s7, s4, 10"); srd(S_X, 16, "s7", 1024)
    A(f"s_lshl_b32 s7, s3, 8\ns_sub_u32 s94, {512*8192}, s7"); srd(S_WQ, 22, "s7", "s94")
    vm = dict(n=0)
    def V(text):
        for tag, sr in (("q", S_WQ), ("g", S_G), ("g", S_U), ("d", S_D), ("o", S_WO)):
            if tag in skip and f"s[{sr}:{sr+3}]" in text and "load" in text and " s7 " in text:
                return vm["n"] - 1
        A(text); vm["n"] += 1; return vm["n"] - 1
    def wait_idx(i): A(f"s_waitcnt vmcnt({min(63, vm['n'] - 1 - i)})")
    A("s_nop 0")
    ix = V(f"buffer_load_dword v33, v31, s[{S_X}:{S_X+3}], 0 offen")
    iw = []
    for j in range(32):
        if j: A(f"s_mov_b32 s7, {j*8192}")
        iw.append(V(f"buffer_load_dwordx4 v[{BUF+4*j}:{BUF+4*j+3}], v30, s[{S_WQ}:{S_WQ+3}], {'s7' if j else '0'} offen {wflag}"))
    V(f"buffer_store_dwordx4 v[12:15], v32, s[{S_WS}:{S_WS+3}], 0 offen sc1")
    A(f"s_mul_i32 s7, s6, 112\ns_sub_u32 s94, {512*3584}, s7"); srd(S_G, 30, "s7", "s94"); srd(S_U, 32, "s7", "s94")
    A(f"s_mul_i32 s7, s6, {56*1024}"); srd(S_D, 34, "s7", 56 * 1024)
    A("s_lshl_b32 s7, s3, 17"); srd(S_WO, 24, "s7", 128 * 1024)
    srd(S_OUT, 38, None, 8192)
    S_GW, S_WR, S_DBG = 68, 72, 36
    srd(S_GW, 36, None, 1024); srd(S_WR, 28, None, 1024); srd(S_DBG, 40, None, 256)
    wait_idx(ix)
    A(f"v_and_b32 v34, 0xffff, v33\nv_lshl_or_b32 v{X0}, v34, 16, v34")
    A(f"v_lshrrev_b32 v34, 16, v33\nv_lshl_or_b32 v{X1}, v34, 16, v34")
    def gemv(acc, nload, src_of, buf_of, wait_of=None):
        for j in range(min(2, nload)): buildA(ASET[j % 3], *src_of(j))
        for j in range(nload):
            if wait_of: wait_of(j)
            a = ASET[j % 3]; r = buf_of(j)
            c = "0" if j == 0 else f"v[{acc}:{acc+3}]"
            A(f"v_mfma_f32_16x16x32_bf16 v[{acc}:{acc+3}], v[{a}:{a+3}], v[{r}:{r+3}], {c}")
            if j + 2 < nload: buildA(ASET[(j + 2) % 3], *src_of(j + 2))
    xsrc = lambda j: ((X0, X1)[j & 1], j >> 1)
    gemv(36, 32, xsrc, lambda j: BUF + 4 * j, lambda j: wait_idx(iw[j]))
    A("v_lshlrev_b32 v35, 5, v3\nv_lshl_add_u32 v35, v4, 4, v35\ns_lshl_b32 s7, s5, 9\nv_add_u32 v35, s7, v35")
    A("s_mov_b32 exec_hi, 0")
    A(f"ds_write_b128 v35, v[36:39] offset:{L_Q}")
    A("s_mov_b64 exec, -1")
    A("s_waitcnt vmcnt(0) lgkmcnt(0)")
    stamp(2)
    A("s_barrier")
    A("s_cmp_lg_u32 s5, 0\ns_cbranch_scc1 L_nosig")
    A("s_lshl_b32 s7, s4, 5\nv_mov_b32 v33, s7\nv_mov_b32 v34, 1")
    A("s_mov_b64 exec, 1")
    A(f"buffer_atomic_add v34, v33, s[{S_DBG}:{S_DBG+3}], 0 offen sc1")
    A("s_mov_b64 exec, -1")
    A("s_waitcnt vmcnt(0)")
    A("L_nosig:")
    A.fence(2)
    vm["n"] = 0
    A("s_movk_i32 s7, 3584\nv_mul_lo_u32 v30, v5, s7")
    A("v_and_b32 v33, 7, v3\nv_lshl_add_u32 v30, v33, 4, v30")
    def paced(text):
        if vm["n"] >= hwin: A(f"s_waitcnt vmcnt({hwin-1})")
        return V(text)
    for (sr, mask) in ((S_G, 0x007f007f), (S_U, 0x7f007f00)):
        A(f"s_mov_b32 exec_lo, {mask:#x}\ns_mov_b32 exec_hi, {mask:#x}")
        for j in range(32):
            if j: A(f"s_mov_b32 s7, {j*3584}")
            paced(f"buffer_load_dwordx4 v[{BUF+4*j}:{BUF+4*j+3}], v30, s[{sr}:{sr+3}], {'s7' if j else '0'} offen {wflag}")
    A("s_mov_b64 exec, -1")
    A("s_movk_i32 s7, 14336\nv_mul_lo_u32 v31, v4, s7\nv_lshl_add_u32 v31, v3, 4, v31\ns_lshl_b32 s7, s5, 8\nv_add_u32 v31, s7, v31")
    igu = vm["n"] - 1
    for t in range(14):
        if t: A(f"s_mov_b32 s7, {t*1024}")
        paced(f"buffer_load_dwordx4 v[{DN+4*t}:{DN+4*t+3}], v31, s[{S_D}:{S_D+3}], {'s7' if t else '0'} offen {wflag}")
    A("v_lshlrev_b32 v33, 4, v2")
    paced(f"buffer_load_dwordx4 v[224:227], v33, s[{S_X}:{S_X+3}], 0 offen")
    paced(f"buffer_load_dwordx4 v[228:231], v33, s[{S_GW}:{S_GW+3}], 0 offen")
    paced(f"buffer_load_dwordx4 v[232:235], v33, s[{S_WR}:{S_WR+3}], 0 offen")
    A("v_and_b32 v33, 1, v4\nv_lshlrev_b32 v33, 1, v33\nv_lshrrev_b32 v34, 1, v4\nv_or_b32 v33, v33, v34")
    A("v_and_b32 v34, 3, v2\nv_lshl_add_u32 v33, v34, 2, v33\ns_lshl_b32 s7, s3, 4\nv_add_u32 v33, s7, v33")
    A("v_lshlrev_b32 v236, 1, v33")
    paced(f"buffer_load_ushort v237, v236, s[{S_X}:{S_X+3}], 0 offen")
    wait_idx(igu)
    gemv(36, 32, xsrc, lambda j: BUF + 4 * j)
    A("s_mov_b32 exec_hi, 0")
    A(f"ds_write_b128 v35, v[36:39] offset:{L_GU}")
    A("s_mov_b64 exec, -1")
    A("s_waitcnt vmcnt(0)")
    G, RS, XC = 238, 239, 237
    for j in range(4):
        A(f"v_lshlrev_b32 v240, 16, v{224+j}\nv_and_b32 v241, s92, v{224+j}")
        A(f"v_lshlrev_b32 v242, 16, v{228+j}\nv_and_b32 v243, s92, v{228+j}")
        A("v_mul_f32 v240, v240, v242\nv_mul_f32 v241, v241, v243")
        A("v_cvt_pk_bf16_f32 v240, v240, v241")
        A("v_and_b32 v241, s92, v240\nv_lshlrev_b32 v240, 16, v240")
        if j == 0: A(f"v_add_f32 v{G}, v240, v241")
        else: A(f"v_add_f32 v{G}, v{G}, v240\nv_add_f32 v{G}, v{G}, v241")
    A(f"v_dot2_f32_bf16 v{RS}, v224, v232, 0")
    for j in range(1, 4): A(f"v_dot2_f32_bf16 v{RS}, v{224+j}, v{232+j}, v{RS}")
    wave_reduce("v_add_f32", G, 240)
    wave_reduce("v_add_f32", RS, 240)
    def sigmoid(d):
        bf16r(d, d)
        A(f"v_mul_f32 v{d}, {f32(-LOG2E)}, v{d}")
        A(f"v_exp_f32 v{d}, v{d}")
        A(f"v_add_f32 v{d}, 1.0, v{d}")
        A(f"v_rcp_f32 v{d}, v{d}")
        bf16r(d, d)
    sigmoid(G); sigmoid(RS)
    A(f"v_lshlrev_b32 v{XC}, 16, v{XC}")
    A("s_waitcnt lgkmcnt(0)")
    stamp(3)
    A("s_barrier")
    stamp(4)
    A("v_mul_u32_u24 v33, 14, v4\nv_add_u32 v33, v33, v3\nv_lshlrev_b32 v33, 2, v33")
    for w in range(4):
        A(f"ds_read2_b32 v[{240+2*w}:{241+2*w}], v33 offset0:{(L_GU + 512*w)//4 - 512} offset1:{(L_GU + 512*w)//4 + 64 - 512}") if False else None
    A(f"v_add_u32 v34, {L_GU}, v33")
    for w in range(4):
        if w == 2: A("v_add_u32 v34, 1024, v34")
        o0 = (w & 1) * 128
        A(f"ds_read2_b32 v[{240+2*w}:{241+2*w}], v34 offset0:{o0} offset1:{o0+64}")
    A("s_lshl_b32 s7, s4, 5\nv_mov_b32 v33, s7")
    A(f"s_mov_b32 s95, {spin}")
    A("L_pollc:")
    A(f"buffer_load_dword v34, v33, s[{S_DBG}:{S_DBG+3}], 0 offen sc1")
    A("s_waitcnt vmcnt(0)")
    A("v_readfirstlane_b32 s7, v34")
    A("s_sub_u32 s95, s95, 1")
    A("s_cmp_eq_u32 s95, 0\ns_cbranch_scc1 L_pollc_done")
    A("s_cmp_ge_u32 s7, 32\ns_cbranch_scc1 L_pollc_done")
    A("s_sleep 8\ns_branch L_pollc")
    A("L_pollc_done:")
    A.fence(2)
    vm["n"] = 0
    A("s_waitcnt lgkmcnt(0)")
    A("v_add_f32 v240, v240, v242\nv_add_f32 v244, v244, v246\nv_add_f32 v241, v241, v243\nv_add_f32 v245, v245, v247")
    A("v_add_f32 v240, v240, v244\nv_add_f32 v241, v241, v245")
    bf16r(240, 240); bf16r(241, 241)
    A(f"v_mul_f32 v242, {f32(-LOG2E)}, v240\nv_exp_f32 v242, v242\nv_add_f32 v242, 1.0, v242\nv_rcp_f32 v242, v242")
    A("v_mul_f32 v242, v240, v242")
    bf16r(242, 242)
    A("v_mul_f32 v242, v242, v241")
    A("v_cvt_pk_bf16_f32 v242, v242, v242")
    gemv(36, 14, lambda t: (242, t), lambda t: DN + 4 * t)
    A("v_lshrrev_b32 v32, 1, v3\nv_lshlrev_b32 v32, 11, v32\nv_and_b32 v33, 1, v3\nv_lshl_add_u32 v32, v33, 5, v32\nv_lshl_add_u32 v32, v4, 4, v32")
    A("s_lshl_b32 s7, s4, 16\ns_lshl_b32 s94, s5, 14\ns_add_u32 s7, s7, s94\ns_lshl_b32 s94, s3, 6\ns_add_u32 s7, s7, s94\nv_add_u32 v32, s7, v32")
    for r in range(4): A(f"v_min_u32 v{36+r}, -2, v{36+r}")
    A(f"s_mov_b32 s94, {WS_Y}")
    A("s_mov_b32 exec_hi, 0")
    V(f"buffer_store_dwordx4 v[36:39], v32, s[{S_WS}:{S_WS+3}], s94 offen sc1")
    A("s_mov_b64 exec, -1")
    A("v_lshlrev_b32 v31, 15, v4\nv_lshl_add_u32 v31, v3, 4, v31\ns_lshl_b32 s7, s5, 8\nv_add_u32 v31, s7, v31")
    for j in range(32):
        if j: A(f"s_mov_b32 s7, {j*1024}")
        paced(f"buffer_load_dwordx4 v[{BUF+4*j}:{BUF+4*j+3}], v31, s[{S_WO}:{S_WO+3}], {'s7' if j else '0'} offen {wflag}")
    A("s_lshl_b32 s7, s2, 11\nv_lshl_add_u32 v30, v2, 4, s7")
    def poll_reduce(name, soff_val, dst):
        A(f"s_mov_b32 s94, {soff_val}\ns_mov_b32 s95, {spin}")
        A(f"L_poll{name}:")
        A(f"buffer_load_dwordx4 v[40:43], v30, s[{S_WS}:{S_WS+3}], s94 offen sc1")
        A(f"buffer_load_dwordx4 v[44:47], v30, s[{S_WS}:{S_WS+3}], s94 offen offset:1024 sc1")
        A("s_waitcnt vmcnt(0)")
        A("v_max3_u32 v48, v40, v41, v42\nv_max3_u32 v49, v43, v44, v45\nv_max3_u32 v48, v48, v46, v47\nv_max_u32 v48, v48, v49")
        A("v_cmp_eq_u32 vcc, -1, v48")
        A("s_sub_u32 s95, s95, 1")
        A(f"s_cmp_eq_u32 s95, 0\ns_cbranch_scc1 L_poll{name}_done")
        A(f"s_cbranch_vccz L_poll{name}_done")
        A(f"s_sleep 2\ns_branch L_poll{name}")
        A(f"L_poll{name}_done:")
        for r in range(4): A(f"v_add_f32 v{40+r}, v{40+r}, v{44+r}")
        A("v_permlane32_swap_b32 v40, v41\nv_permlane32_swap_b32 v42, v43")
        A("v_add_f32 v40, v40, v41\nv_add_f32 v42, v42, v43")
        A("v_permlane16_swap_b32 v40, v42")
        A(f"v_add_f32 v{dst}, v40, v42")
        A(f"v_add_f32_dpp v{dst}, v{dst}, v{dst} row_ror:4 {DPPF}")
        A(f"v_add_f32_dpp v{dst}, v{dst}, v{dst} row_ror:8 {DPPF}")
    A("s_cmp_lg_u32 s5, 0\ns_cbranch_scc1 L_noy")
    poll_reduce("y", WS_Y, 240)
    bf16r(240, 240)
    A(f"v_mul_f32 v240, v240, v{RS}"); bf16r(240, 240)
    A(f"v_add_f32 v240, v{XC}, v240"); bf16r(240, 240)
    A(f"v_sub_f32 v241, 1.0, v{G}"); bf16r(241, 241)
    A("v_mul_f32 v240, v241, v240"); bf16r(240, 240)
    A("s_lshl_b32 s7, s4, 10\nv_add_u32 v236, s7, v236")
    A("L_noy:")
    A("v_lshlrev_b32 v33, 3, v2")
    A("s_waitcnt vmcnt(0)")
    stamp(5)
    A("s_barrier")
    for w in range(4):
        A(f"ds_read_b64 v[{244+2*w}:{245+2*w}], v33 offset:{L_O + 512*w}")
    stamp(6)
    A("s_waitcnt lgkmcnt(0)")
    A("v_add_f32 v244, v244, v246\nv_add_f32 v248, v248, v250\nv_add_f32 v245, v245, v247\nv_add_f32 v249, v249, v251")
    A("v_add_f32 v244, v244, v248\nv_add_f32 v245, v245, v249")
    A(f"v_cvt_pk_bf16_f32 v{X0}, v244, v244\nv_cvt_pk_bf16_f32 v{X1}, v245, v245")
    gemv(36, 32, xsrc, lambda j: BUF + 4 * j)
    for r in range(4): A(f"v_min_u32 v{36+r}, -2, v{36+r}")
    A("s_mov_b32 exec_hi, 0")
    A(f"buffer_store_dwordx4 v[36:39], v32, s[{S_WS}:{S_WS+3}], 0 offen sc1")
    A("s_mov_b64 exec, -1")
    A("s_cmp_lg_u32 s5, 0\ns_cbranch_scc1 L_hend")
    poll_reduce("a", WS_A, 241)
    bf16r(241, 241)
    A(f"v_mul_f32 v241, v{G}, v241"); bf16r(241, 241)
    A("v_add_f32 v241, v241, v240")
    A("v_cvt_pk_bf16_f32 v241, v241, v241")
    A("s_mov_b32 exec_lo, 0x000f000f\ns_mov_b32 exec_hi, 0x000f000f")
    A(f"buffer_store_short v241, v236, s[{S_OUT}:{S_OUT+3}], 0 offen")
    A("L_hend:")
    if ts:
        A("s_waitcnt vmcnt(0)")
        stamp(7)
        A("s_add_u32 s5, s5, 4")
        ts_store(8)
    A("L_done:\ns_endpgm")
    A.raw(f'''.section .rodata,"a"
.p2align 6
.amdhsa_kernel {KN}
  .amdhsa_next_free_vgpr 256
  .amdhsa_next_free_sgpr 102
  .amdhsa_accum_offset 256
  .amdhsa_group_segment_fixed_size 0
  .amdhsa_kernarg_size 112
  .amdhsa_user_sgpr_count 2
  .amdhsa_user_sgpr_kernarg_segment_ptr 1
  .amdhsa_system_sgpr_workgroup_id_x 1
  .amdhsa_float_denorm_mode_32 3
.end_amdhsa_kernel''')
    return A.text(), A

if __name__ == "__main__":
    import argparse
    ap = argparse.ArgumentParser()
    ap.add_argument("-o", default="main.s")
    ap.add_argument("kv", nargs="*")
    a = ap.parse_args()
    kw = {}
    for s in a.kv:
        k, v = s.split("=")
        try: v = int(v)
        except ValueError: pass
        kw[k] = v
    txt, A = gen(**kw)
    open(a.o, "w").write(txt)
    print(a.o, "lines", len(A.lines), "auto-nops", A.nops)
```

```python
import sys, struct
from asmlib import Asm
KN = "gated_mix__mha_block_cached__moe_arch_mod__decode_kernel"
HDR = open("gated_mix__mha_block_cached__moe_arch_mod__decode.s.ref").read().split("; Override launch")[0] if False else ""

def f32(x): return "0x%08x" % struct.unpack("<I", struct.pack("<f", x))[0]
LOG2E = 1.4426950408889634
SCALE = 128 ** -0.5
DPPF = "row_mask:0xf bank_mask:0xf"
def brev4(n): return ((n & 1) << 3) | ((n & 2) << 1) | ((n & 4) >> 1) | ((n & 8) >> 3)

L_Q, L_GU, L_SM, L_O = 0, 2048, 4096, 4608
LDS_BYTES = 8192
WS_A, WS_Y, WS_TS = 0, 1 << 20, 4 << 20

def gen(W=5, R=40, W0=5, nB1=37, rate=2, burst2=4, hwin=2, wflag="", ts=False, kvflag="nt", prio=True, spin=1 << 22):
    A = Asm()
    A.raw(f"; @launch grid=(256,1,1) block=(512,1,1) lds={LDS_BYTES}")
    A.raw('.amdgcn_target "amdgcn-amd-amdhsa--gfx950"')
    A.raw(f".text\n.globl {KN}\n.p2align 8\n.type {KN},@function\n{KN}:")
    tsn = [0]
    def stamp(i):
        if ts: A(f"s_memrealtime s[{64+2*i}:{65+2*i}]") if False else A(f"s_memrealtime s[{TSB+2*i}:{TSB+1+2*i}]")
    TSB = 76
    A("s_cmp_ge_u32 s2, 256\ns_cbranch_scc1 L_done")
    stamp(0)
    A("s_load_dwordx16 s[16:31], s[0:1], 0")
    A("s_load_dwordx8 s[32:39], s[0:1], 64")
    A("s_load_dwordx4 s[40:43], s[0:1], 96")
    if hmap == 0:
        A("s_and_b32 s3, s2, 31")
        A("s_lshr_b32 s4, s2, 5")
    elif hmap == 1:
        A("s_and_b32 s3, s2, 7\ns_lshl_b32 s3, s3, 2\ns_bfe_u32 s4, s2, 0x20003\ns_or_b32 s3, s3, s4\ns_lshr_b32 s4, s2, 5")
    elif hmap == 2:
        A("s_bfe_u32 s3, s2, 0x20001\ns_lshl_b32 s3, s3, 3\ns_bfe_u32 s4, s2, 0x30003\ns_or_b32 s3, s3, s4")
        A("s_and_b32 s4, s2, 1\ns_lshl_b32 s4, s4, 2\ns_lshr_b32 s6, s2, 6\ns_or_b32 s4, s4, s6")
    elif hmap == 3:
        A("s_bfe_u32 s3, s2, 0x10002\ns_lshl_b32 s3, s3, 4\ns_bfe_u32 s4, s2, 0x40003\ns_or_b32 s3, s3, s4")
        A("s_and_b32 s4, s2, 3\ns_lshl_b32 s4, s4, 1\ns_lshr_b32 s6, s2, 7\ns_or_b32 s4, s4, s6")
    elif hmap == 4:
        A("s_lshr_b32 s3, s2, 3\ns_and_b32 s4, s2, 7")
    if ts: A("s_mov_b32 s100, s2")
    A("s_lshl_b32 s2, s4, 5\ns_or_b32 s2, s2, s3")
    A("v_lshrrev_b32 v1, 6, v0")
    A("v_and_b32 v2, 63, v0")
    A("v_readfirstlane_b32 s5, v1")
    A("v_and_b32 v3, 15, v2")
    A("v_lshrrev_b32 v4, 4, v2")
    A("v_mov_b32 v10, 0xffff")
    A("v_mov_b32 v11, 0xffff0000")
    for r in range(4):
        A(f"v_cmp_eq_u32 vcc, {2*r}, v3")
        A(f"v_cndmask_b32 v{6+r}, 0, v10, vcc")
        A(f"v_cmp_eq_u32 vcc, {2*r+1}, v3")
        A(f"v_cndmask_b32 v{6+r}, v{6+r}, v11, vcc")
    A("s_mov_b32 s92, 0xffff0000")
    A(f"s_mov_b32 s93, {f32(LOG2E)}")
    A("s_cmp_ge_u32 s5, 4\ns_cbranch_scc1 L_helper")

    def bf16r(d, s):
        A(f"v_cvt_pk_bf16_f32 v{d}, v{s}, v{s}")
        A(f"v_and_b32 v{d}, s92, v{d}")
    def wave_reduce(op, v, t):
        for d in (8, 4, 2, 1):
            A(f"{op}_dpp v{v}, v{v}, v{v} row_ror:{d} {DPPF}")
        for p in ("v_permlane16_swap_b32", "v_permlane32_swap_b32"):
            A(f"v_mov_b32 v{t}, v{v}")
            A(f"{p} v{v}, v{t}")
            A(f"{op} v{v}, v{v}, v{t}")
    def buildA(aset, src, lane):
        for r in range(4):
            A(f"v_and_b32_dpp v{aset+r}, v{src}, v{6+r} row_newbcast:{lane} {DPPF}")
    def ts_store(nst):
        if not ts: return
        A("s_getreg_b32 s94, hwreg(HW_REG_XCC_ID)")
        A("s_waitcnt lgkmcnt(0)")
        A("s_lshl_b32 s95, s100, 3\ns_add_u32 s95, s95, s5\ns_lshl_b32 s95, s95, 6")
        A(f"s_add_u32 s95, s95, {WS_TS}")
        A("s_mov_b32 s96, s42\ns_and_b32 s97, s43, 0xffff\ns_mov_b32 s98, 0x1000000\ns_mov_b32 s99, 0x00020000")
        A("s_mov_b64 exec, 1")
        A("v_mov_b32 v1, s95")
        for i in range(8):
            A(f"v_mov_b32 v{16+i}, s{TSB+2*i}")
        A("v_mov_b32 v24, s94")
        A("buffer_store_dwordx4 v[16:19], v1, s[96:99], 0 offen")
        A("buffer_store_dwordx4 v[20:23], v1, s[96:99], 0 offen offset:16")
        A("buffer_store_dword v24, v1, s[96:99], 0 offen offset:32")
        A("s_waitcnt vmcnt(0)")

    ASET = [16, 20, 24]; ACC = 12; Q = 28; T0 = 32; S0 = 64; TMP = 80; RING = 96
    assert RING + 4 * R <= 256
    if prio: A("s_setprio 3")
    A("v_lshlrev_b32 v1, 12, v1")
    A("v_lshl_add_u32 v1, v2, 4, v1")
    A("s_lshl_b32 s6, s2, 20")
    A("s_mov_b32 s44, 0xcccccccc\ns_mov_b32 s45, 0xcccccccc\ns_mov_b32 s46, 0xaaaaaaaa\ns_mov_b32 s47, 0xaaaaaaaa")
    A("s_waitcnt lgkmcnt(0)")
    stamp(1)
    A("s_add_u32 s8, s18, s6\ns_addc_u32 s9, s19, 0\ns_and_b32 s9, s9, 0xffff\ns_mov_b32 s10, 0x100000\ns_mov_b32 s11, 0x00020000")
    A("s_add_u32 s12, s20, s6\ns_addc_u32 s13, s21, 0\ns_and_b32 s13, s13, 0xffff\ns_mov_b32 s14, 0x100000\ns_mov_b32 s15, 0x00020000")
    A("s_mov_b32 s7, 0")
    NL = 256
    st = dict(issued=0, consumed=0, landed=0)
    def ring(n): return RING + 4 * (n % R)
    def issue():
        n = st["issued"]
        assert n - R < st["consumed"], (n, st)
        srd = 8 if n < NL else 12
        if n == NL: A("s_mov_b32 s7, 0")
        r = ring(n)
        A(f"buffer_load_dwordx4 v[{r}:{r+3}], v1, s[{srd}:{srd+3}], s7 offen offset:{(n & 3) * 1024} {kvflag}")
        if n & 3 == 3 and n != NL - 1 and n != 2 * NL - 1: A("s_add_u32 s7, s7, 0x4000")
        st["issued"] += 1
    def waitvm(k):
        k = max(k, 0)
        if st["issued"] - k > st["landed"]:
            A(f"s_waitcnt vmcnt({k})")
            st["landed"] = st["issued"] - k
    def T(n): return T0 + (n & 31)
    def tree(e, lvl):
        a = T(e - (1 << lvl) + 1); b = T(e - (1 << (lvl - 1)) + 1)
        if lvl == 1:
            A(f"v_add_f32_dpp v{a}, v{a}, v{a} row_ror:8 row_mask:0xf bank_mask:0x3")
            A(f"v_add_f32_dpp v{a}, v{b}, v{b} row_ror:8 row_mask:0xf bank_mask:0xc")
        elif lvl == 2:
            A(f"v_add_f32_dpp v{a}, v{a}, v{a} row_shl:4 row_mask:0xf bank_mask:0x5")
            A(f"v_add_f32_dpp v{a}, v{b}, v{b} row_shr:4 row_mask:0xf bank_mask:0xa")
        else:
            qp = "[2,3,0,1]" if lvl == 3 else "[1,0,3,2]"
            m = "s[44:45]" if lvl == 3 else "s[46:47]"
            A(f"v_add_f32_dpp v{a}, v{a}, v{a} quad_perm:{qp} {DPPF}")
            A(f"v_add_f32_dpp v{b}, v{b}, v{b} quad_perm:{qp} {DPPF}")
            A(f"v_cndmask_b32 v{a}, v{a}, v{b}, {m}")
            if lvl == 4:
                k = e >> 4
                bf16r(TMP, a)
                A(f"v_mul_f32 v{TMP}, {f32(SCALE)}, v{TMP}")
                bf16r(S0 + k, TMP)
                if k == 0: A(f"v_mov_b32 v{TMP+1}, v{S0}")
                else: A(f"v_max_f32 v{TMP+1}, v{TMP+1}, v{S0+k}")
    def tree_at(n):
        for lvl in (4, 3, 2, 1):
            e = n - lvl
            if 0 <= e < NL and (e + 1) % (1 << lvl) == 0: tree(e, lvl)
    def consume():
        n = st["consumed"]
        assert n < st["landed"], (n, st)
        r = ring(n)
        if n < NL:
            t = T(n)
            A(f"v_dot2_f32_bf16 v{t}, v{r}, v{Q}, 0")
            for j in range(1, 4): A(f"v_dot2_f32_bf16 v{t}, v{r+j}, v{Q+j}, v{t}")
            tree_at(n)
        else:
            m = n - NL
            a = ASET[m % 3]
            c = "0" if m == 0 else f"v[{ACC}:{ACC+3}]"
            A(f"v_mfma_f32_16x16x32_bf16 v[{ACC}:{ACC+3}], v[{a}:{a+3}], v[{r}:{r+3}], {c}")
            if m + 2 < NL: buildA(ASET[(m + 2) % 3], S0 + ((m + 2) >> 4), brev4((m + 2) & 15))
        st["consumed"] += 1
    def win(n):
        return max(Wp, W0 - max(0, n - W0)) if n < 64 else W
    while st["issued"] < nB1:
        waitvm(win(st["issued"]) - 1); issue()
    stamp(2)
    A("s_barrier")
    stamp(3)
    A("v_lshlrev_b32 v5, 5, v3")
    for w in range(4):
        A(f"ds_read_b128 v[{T0+8*w}:{T0+8*w+3}], v5 offset:{L_Q + 512*w}")
        A(f"ds_read_b128 v[{T0+8*w+4}:{T0+8*w+7}], v5 offset:{L_Q + 512*w + 16}")
    for _ in range(2):
        waitvm(W - 1 + 2); issue()
    A("s_waitcnt lgkmcnt(0)")
    for j in range(8):
        A(f"v_add_f32 v{T0+j}, v{T0+j}, v{T0+8+j}")
        A(f"v_add_f32 v{T0+16+j}, v{T0+16+j}, v{T0+24+j}")
    for j in range(8):
        A(f"v_add_f32 v{T0+j}, v{T0+j}, v{T0+16+j}")
    for j in range(4):
        A(f"v_cvt_pk_bf16_f32 v{Q+j}, v{T0+2*j}, v{T0+2*j+1}")
    def step(limit):
        if st["issued"] < 2 * NL and st["issued"] - R < st["consumed"]:
            n = st["issued"]
            w_ = int(str(wpat)[n % len(str(wpat))])
            if n < k6 or NL + 8 <= n < NL + v6: w_ = int(str(wbusy)[n % len(str(wbusy))])
            if n >= 2 * NL - endN: w_ = endW
            waitvm(w_ - 1); issue()
        else:
            waitvm(st["issued"] - st["consumed"] - 1)
        k = 0
        while k < rate and st["consumed"] < min(limit, st["landed"]):
            consume(); k += 1
    while st["consumed"] < NL:
        step(NL)
    for _ in range(burst2): issue()
    for n in range(NL, NL + 5): tree_at(n)
    stamp(4)
    MX, SUM, NM = TMP + 1, TMP + 2, TMP + 3
    wave_reduce("v_max_f32", MX, TMP)
    A(f"v_mul_f32 v{NM}, s93, v{MX}")
    for k in range(16):
        A(f"v_fma_f32 v{S0+k}, v{S0+k}, s93, -v{NM}")
    for k in range(16):
        A(f"v_exp_f32 v{S0+k}, v{S0+k}")
    for k in range(8):
        A(f"v_add_f32 v{T0+k}, v{S0+2*k}, v{S0+2*k+1}")
    for wd in (4, 2, 1):
        for k in range(wd):
            A(f"v_add_f32 v{T0+k}, v{T0+k}, v{T0+wd+k}")
    A(f"v_mov_b32 v{SUM}, v{T0}")
    wave_reduce("v_add_f32", SUM, TMP)
    A(f"v_mov_b32 v{T0}, v{MX}\nv_mov_b32 v{T0+1}, v{SUM}")
    A(f"s_lshl_b32 s48, s5, 3\nv_mov_b32 v5, s48")
    A("s_mov_b64 exec, 1")
    A(f"ds_write_b64 v5, v[{T0}:{T0+1}] offset:{L_SM}")
    A("s_mov_b64 exec, -1")
    A("v_mov_b32 v5, 0")
    A("s_waitcnt lgkmcnt(0)")
    A("s_barrier")
    A(f"ds_read_b128 v[{T0}:{T0+3}], v5 offset:{L_SM}")
    A(f"ds_read_b128 v[{T0+4}:{T0+7}], v5 offset:{L_SM+16}")
    stamp(5)
    waitvm(W - 1); issue()
    A("s_waitcnt lgkmcnt(0)")
    GM = T0 + 8
    A(f"v_max3_f32 v{GM}, v{T0}, v{T0+2}, v{T0+4}")
    A(f"v_max_f32 v{GM}, v{GM}, v{T0+6}")
    for i in range(4):
        A(f"v_sub_f32 v{T0+2*i}, v{T0+2*i}, v{GM}")
    A(f"v_sub_f32 v{MX}, v{MX}, v{GM}")
    for i in range(4):
        A(f"v_mul_f32 v{T0+2*i}, s93, v{T0+2*i}")
    A(f"v_mul_f32 v{MX}, s93, v{MX}")
    for i in range(4):
        A(f"v_exp_f32 v{T0+2*i}, v{T0+2*i}")
    A(f"v_exp_f32 v{MX}, v{MX}")
    A(f"v_mul_f32 v{SUM}, v{T0}, v{T0+1}")
    for i in range(1, 4):
        A(f"v_fma_f32 v{SUM}, v{T0+2*i}, v{T0+2*i+1}, v{SUM}")
    A(f"v_rcp_f32 v{NM}, v{SUM}")
    A(f"v_fma_f32 v{TMP}, -v{SUM}, v{NM}, 1.0")
    A(f"v_fma_f32 v{NM}, v{TMP}, v{NM}, v{NM}")
    A(f"v_mul_f32 v{NM}, v{NM}, v{MX}")
    for k in range(16):
        A(f"v_mul_f32 v{S0+k}, v{S0+k}, v{NM}")
    for k in range(16):
        A(f"v_cvt_pk_bf16_f32 v{S0+k}, v{S0+k}, v{S0+k}")
    buildA(ASET[0], S0, brev4(0)); buildA(ASET[1], S0, brev4(1))
    while st["consumed"] < 2 * NL:
        step(2 * NL)
    stamp(6)
    A("v_lshlrev_b32 v5, 5, v3")
    A("v_lshl_add_u32 v5, v4, 4, v5")
    A("s_lshl_b32 s48, s5, 9\nv_add_u32 v5, s48, v5")
    A("s_mov_b32 exec_hi, 0")
    A(f"ds_write_b128 v5, v[{ACC}:{ACC+3}] offset:{L_O}")
    A("s_waitcnt lgkmcnt(0)")
    A("s_barrier")
    stamp(7)
    ts_store(8)
    A("s_endpgm")

    A("L_helper:")
    A.fence(4)
    stamp0 = stamp
    def stamp(i, d=0):
        if d == diag or i <= 1: stamp0(i)
    BUF = 96; DN = 40; X0, X1 = 28, 29
    DNR = lambda t: DN + 4 * t if t < 14 else 248 + 4 * (t - 14)
    A("s_sub_u32 s5, s5, 4")
    A("s_mov_b32 s6, s3")
    A("s_lshl_b32 s7, s5, 7")
    A("v_add_u32 v5, s7, v4")
    A("v_lshlrev_b32 v30, 13, v5")
    A("v_lshl_add_u32 v30, v3, 4, v30")
    A("v_lshl_add_u32 v31, v3, 2, v5")
    A("v_lshlrev_b32 v31, 1, v31")
    A("s_waitcnt lgkmcnt(0)")
    stamp(1)
    def srd(d, p, off_s, size):
        if off_s is None:
            A(f"s_mov_b32 s{d}, s{p}\ns_and_b32 s{d+1}, s{p+1}, 0xffff")
        else:
            A(f"s_add_u32 s{d}, s{p}, {off_s}\ns_addc_u32 s{d+1}, s{p+1}, 0\ns_and_b32 s{d+1}, s{d+1}, 0xffff")
        A(f"s_mov_b32 s{d+2}, {size}\ns_mov_b32 s{d+3}, 0x00020000")
    S_WQ, S_X, S_WS, S_G, S_U, S_D, S_WO, S_OUT = 8, 12, 44, 48, 52, 56, 60, 64
    S_GW, S_WR, S_DBG = 68, 72, 36
    srd(S_WS, 42, None, 16 << 20)
    A("s_lshl_b32 s7, s4, 10"); srd(S_X, 16, "s7", 1024)
    A(f"s_lshl_b32 s7, s3, 8\ns_sub_u32 s94, {512*8192}, s7"); srd(S_WQ, 22, "s7", "s94")
    vm = dict(n=0)
    def V(text):
        for tag, sr in (("q", S_WQ), ("g", S_G), ("g", S_U), ("d", S_D), ("o", S_WO)):
            if tag in skip and f"s[{sr}:{sr+3}]" in text and "load" in text and " s7 " in text:
                return vm["n"] - 1
        A(text); vm["n"] += 1; return vm["n"] - 1
    def wait_idx(i): A(f"s_waitcnt vmcnt({min(63, vm['n'] - 1 - i)})")
    A("s_nop 0")
    def gemv(acc, nload, src_of, buf_of, wait_of=None):
        for j in range(min(2, nload)): buildA(ASET[j % 3], *src_of(j))
        for j in range(nload):
            if wait_of: wait_of(j)
            a = ASET[j % 3]; r = buf_of(j)
            c = "0" if j == 0 else f"v[{acc}:{acc+3}]"
            A(f"v_mfma_f32_16x16x32_bf16 v[{acc}:{acc+3}], v[{a}:{a+3}], v[{r}:{r+3}], {c}")
            if j + 2 < nload: buildA(ASET[(j + 2) % 3], *src_of(j + 2))
    xsrc = lambda j: ((X0, X1)[j >> 4], j & 15)
    V(f"buffer_load_ushort v33, v31, s[{S_X}:{S_X+3}], 0 offen")
    ix = V(f"buffer_load_ushort v34, v31, s[{S_X}:{S_X+3}], 0 offen offset:128")
    iw = []
    def wq_issue(j):
        if j: A(f"s_mov_b32 s7, {j*32768}")
        iw.append(V(f"buffer_load_dwordx4 v[{BUF+4*j}:{BUF+4*j+3}], v30, s[{S_WQ}:{S_WQ+3}], {'s7' if j else '0'} offen {wflag}"))
    for j in range(qlag): wq_issue(j)
    wait_idx(ix)
    stamp(2, 1)
    A(f"v_lshl_or_b32 v{X0}, v33, 16, v33\nv_lshl_or_b32 v{X1}, v34, 16, v34")
    def wq_wait(j):
        wait_idx(iw[j])
        if j + qlag < 32: wq_issue(j + qlag)
        if j == 0: stamp(3, 1)
        if j == 15: stamp(4, 1)
        if j == 31: stamp(5, 1)
    gemv(36, 32, xsrc, lambda j: BUF + 4 * j, wq_wait)
    A("v_lshlrev_b32 v35, 5, v3\nv_lshl_add_u32 v35, v4, 4, v35\ns_lshl_b32 s7, s5, 9\nv_add_u32 v35, s7, v35")
    A("s_mov_b32 exec_hi, 0")
    A(f"ds_write_b128 v35, v[36:39] offset:{L_Q}")
    A("s_mov_b64 exec, -1")
    A("s_waitcnt lgkmcnt(0)")
    stamp(6, 1)
    stamp(2)
    A("s_barrier")
    stamp(7, 1)
    A("s_min_u32 s7, s6, 27\ns_lshl_b32 s7, s7, 16"); srd(S_D, 34, "s7", 64 * 1024)
    A("s_lshl_b32 s7, s3, 17"); srd(S_WO, 24, "s7", 128 * 1024)
    srd(S_OUT, 38, None, 8192)
    srd(S_GW, 36, None, 1024); srd(S_WR, 28, None, 1024); srd(S_DBG, 40, None, 256)
    A("s_cmp_lg_u32 s5, 0\ns_cbranch_scc1 L_nosig")
    A("s_lshl_b32 s7, s2, 11\nv_lshl_add_u32 v32, v2, 4, s7")
    A("v_mov_b32 v12, -1\nv_mov_b32 v13, -1\nv_mov_b32 v14, -1\nv_mov_b32 v15, -1")
    A(f"s_mov_b32 s94, {WS_Y}")
    for so in ("0", "s94"):
        for off in (0, 1024):
            A(f"buffer_store_dwordx4 v[12:15], v32, s[{S_WS}:{S_WS+3}], {so} offen offset:{off} sc1")
    A("s_lshl_b32 s7, s4, 5\nv_mov_b32 v33, s7\nv_mov_b32 v34, 1")
    A("s_waitcnt vmcnt(0)")
    A("s_mov_b64 exec, 1")
    A(f"buffer_atomic_add v34, v33, s[{S_DBG}:{S_DBG+3}], 0 offen sc1")
    A("s_mov_b64 exec, -1")
    A("s_waitcnt vmcnt(0)")
    A("L_nosig:")
    A.fence(2)
    vm["n"] = 0
    def paced(text):
        if vm["n"] >= hwin: A(f"s_waitcnt vmcnt({hwin-1})")
        return V(text)
    A("v_lshlrev_b32 v31, 10, v4\nv_lshl_add_u32 v31, v3, 4, v31\ns_lshl_b32 s7, s5, 8\nv_add_u32 v31, s7, v31")
    A("s_cmp_ge_u32 s6, 28\ns_cbranch_scc1 L_noffn1")
    A("s_movk_i32 s7, 3584\nv_mul_lo_u32 v30, v5, s7")
    A("v_and_b32 v33, 7, v3\nv_lshl_add_u32 v30, v33, 4, v30")
    A("s_lshl_b32 s7, s6, 7\nv_add_u32 v30, s7, v30")
    A("v_cmp_gt_u32 vcc, 8, v3")
    A("v_mov_b32 v10, s32\nv_mov_b32 v11, s30\nv_cndmask_b32 v10, v10, v11, vcc")
    A("v_mov_b32 v33, s33\nv_mov_b32 v11, s31\nv_cndmask_b32 v11, v33, v11, vcc")
    A("v_add_co_u32 v10, vcc, v10, v30\nv_addc_co_u32 v11, vcc, 0, v11, vcc")
    A("s_movk_i32 s7, 14336")
    for j in range(32):
        if "g" in skip and j: continue
        paced(f"global_load_dwordx4 v[{BUF+4*j}:{BUF+4*j+3}], v[10:11], off {wflag}")
        if j < 31: A("v_add_co_u32 v10, vcc, s7, v10\nv_addc_co_u32 v11, vcc, 0, v11, vcc")
    igu = vm["n"] - 1
    for t in range(2):
        if t: A(f"s_mov_b32 s7, {t*4096}")
        paced(f"buffer_load_dwordx4 v[{DNR(t)}:{DNR(t)+3}], v31, s[{S_D}:{S_D+3}], {'s7' if t else '0'} offen {wflag}")
    wait_idx(igu)
    gemv(36, 32, xsrc, lambda j: BUF + 4 * j)
    A("s_mov_b32 exec_hi, 0")
    A(f"ds_write_b128 v35, v[36:39] offset:{L_GU}")
    A("s_mov_b64 exec, -1")
    for t in range(2, 16):
        A(f"s_mov_b32 s7, {t*4096}")
        paced(f"buffer_load_dwordx4 v[{DNR(t)}:{DNR(t)+3}], v31, s[{S_D}:{S_D+3}], s7 offen {wflag}")
    A("s_waitcnt vmcnt(0)")
    A("L_noffn1:")
    A.fence(2)
    vm["n"] = 0
    A("v_lshlrev_b32 v33, 4, v2")
    paced(f"buffer_load_dwordx4 v[224:227], v33, s[{S_X}:{S_X+3}], 0 offen")
    paced(f"buffer_load_dwordx4 v[228:231], v33, s[{S_GW}:{S_GW+3}], 0 offen")
    paced(f"buffer_load_dwordx4 v[232:235], v33, s[{S_WR}:{S_WR+3}], 0 offen")
    A("v_and_b32 v33, 1, v4\nv_lshlrev_b32 v33, 1, v33\nv_lshrrev_b32 v34, 1, v4\nv_or_b32 v33, v33, v34")
    A("v_and_b32 v34, 3, v2\nv_lshl_add_u32 v33, v34, 2, v33\ns_lshl_b32 s7, s3, 4\nv_add_u32 v33, s7, v33")
    A("v_lshlrev_b32 v236, 1, v33")
    paced(f"buffer_load_ushort v237, v236, s[{S_X}:{S_X+3}], 0 offen")
    A("s_waitcnt vmcnt(0)")
    G, RS, XC = 238, 239, 237
    for j in range(4):
        A(f"v_lshlrev_b32 v240, 16, v{224+j}\nv_and_b32 v241, s92, v{224+j}")
        A(f"v_lshlrev_b32 v242, 16, v{228+j}\nv_and_b32 v243, s92, v{228+j}")
        A("v_mul_f32 v240, v240, v242\nv_mul_f32 v241, v241, v243")
        A("v_cvt_pk_bf16_f32 v240, v240, v241")
        A("v_and_b32 v241, s92, v240\nv_lshlrev_b32 v240, 16, v240")
        if j == 0: A(f"v_add_f32 v{G}, v240, v241")
        else: A(f"v_add_f32 v{G}, v{G}, v240\nv_add_f32 v{G}, v{G}, v241")
    A(f"v_dot2_f32_bf16 v{RS}, v224, v232, 0")
    for j in range(1, 4): A(f"v_dot2_f32_bf16 v{RS}, v{224+j}, v{232+j}, v{RS}")
    wave_reduce("v_add_f32", G, 240)
    wave_reduce("v_add_f32", RS, 240)
    def sigmoid(d):
        bf16r(d, d)
        A(f"v_mul_f32 v{d}, {f32(-LOG2E)}, v{d}")
        A(f"v_exp_f32 v{d}, v{d}")
        A(f"v_add_f32 v{d}, 1.0, v{d}")
        A(f"v_rcp_f32 v{d}, v{d}")
        bf16r(d, d)
    sigmoid(G); sigmoid(RS)
    A(f"v_lshlrev_b32 v{XC}, 16, v{XC}")
    A("s_waitcnt lgkmcnt(0)")
    stamp(3)
    A("s_barrier")
    stamp(4)
    A("v_lshl_add_u32 v33, v3, 2, v4\nv_lshlrev_b32 v33, 2, v33")
    for w in range(4):
        A(f"ds_read2_b32 v[{240+2*w}:{241+2*w}], v33 offset0:{(L_GU + 512*w)//4 - 512} offset1:{(L_GU + 512*w)//4 + 64 - 512}") if False else None
    A(f"v_add_u32 v34, {L_GU}, v33")
    for w in range(4):
        if w == 2: A("v_add_u32 v34, 1024, v34")
        o0 = (w & 1) * 128
        A(f"ds_read2_b32 v[{240+2*w}:{241+2*w}], v34 offset0:{o0} offset1:{o0+64}")
    A("s_lshl_b32 s7, s4, 5\nv_mov_b32 v33, s7")
    A(f"s_mov_b32 s95, {spin}")
    A("L_pollc:")
    A(f"buffer_load_dword v34, v33, s[{S_DBG}:{S_DBG+3}], 0 offen sc1")
    A("s_waitcnt vmcnt(0)")
    A("v_readfirstlane_b32 s7, v34")
    A("s_sub_u32 s95, s95, 1")
    A("s_cmp_eq_u32 s95, 0\ns_cbranch_scc1 L_pollc_done")
    A("s_cmp_ge_u32 s7, 32\ns_cbranch_scc1 L_pollc_done")
    A("s_sleep 8\ns_branch L_pollc")
    A("L_pollc_done:")
    A.fence(2)
    vm["n"] = 0
    A("s_waitcnt lgkmcnt(0)")
    A("v_add_f32 v240, v240, v242\nv_add_f32 v244, v244, v246\nv_add_f32 v241, v241, v243\nv_add_f32 v245, v245, v247")
    A("v_add_f32 v240, v240, v244\nv_add_f32 v241, v241, v245")
    bf16r(240, 240); bf16r(241, 241)
    A(f"v_mul_f32 v242, {f32(-LOG2E)}, v240\nv_exp_f32 v242, v242\nv_add_f32 v242, 1.0, v242\nv_rcp_f32 v242, v242")
    A("v_mul_f32 v242, v240, v242")
    bf16r(242, 242)
    A("v_mul_f32 v242, v242, v241")
    A("v_cvt_pk_bf16_f32 v242, v242, v242")
    gemv(36, 16, lambda t: (242, t), DNR)
    A("s_cmp_lt_u32 s6, 28\ns_cbranch_scc1 L_ffn2")
    A.fence(8)
    A("v_mov_b32 v36, 0\nv_mov_b32 v37, 0\nv_mov_b32 v38, 0\nv_mov_b32 v39, 0")
    A("L_ffn2:")
    A.fence(8)
    A("v_lshrrev_b32 v32, 1, v3\nv_lshlrev_b32 v32, 11, v32\nv_and_b32 v33, 1, v3\nv_lshl_add_u32 v32, v33, 5, v32\nv_lshl_add_u32 v32, v4, 4, v32")
    A("s_lshl_b32 s7, s4, 16\ns_lshl_b32 s94, s5, 14\ns_add_u32 s7, s7, s94\ns_lshl_b32 s94, s3, 6\ns_add_u32 s7, s7, s94\nv_add_u32 v32, s7, v32")
    for r in range(4): A(f"v_min_u32 v{36+r}, -2, v{36+r}")
    A(f"s_mov_b32 s94, {WS_Y}")
    A("s_mov_b32 exec_hi, 0")
    V(f"buffer_store_dwordx4 v[36:39], v32, s[{S_WS}:{S_WS+3}], s94 offen sc1")
    A("s_mov_b64 exec, -1")
    A("v_lshlrev_b32 v31, 15, v4\nv_lshl_add_u32 v31, v3, 4, v31\ns_lshl_b32 s7, s5, 8\nv_add_u32 v31, s7, v31")
    for j in range(32):
        if j: A(f"s_mov_b32 s7, {j*1024}")
        paced(f"buffer_load_dwordx4 v[{BUF+4*j}:{BUF+4*j+3}], v31, s[{S_WO}:{S_WO+3}], {'s7' if j else '0'} offen {wflag}")
    A("s_lshl_b32 s7, s2, 11\nv_lshl_add_u32 v30, v2, 4, s7")
    def poll_reduce(name, soff_val, dst):
        A(f"s_mov_b32 s94, {soff_val}\ns_mov_b32 s95, {spin}")
        A(f"L_poll{name}:")
        A(f"buffer_load_dwordx4 v[40:43], v30, s[{S_WS}:{S_WS+3}], s94 offen sc1")
        A(f"buffer_load_dwordx4 v[44:47], v30, s[{S_WS}:{S_WS+3}], s94 offen offset:1024 sc1")
        A("s_waitcnt vmcnt(0)")
        A("v_max3_u32 v48, v40, v41, v42\nv_max3_u32 v49, v43, v44, v45\nv_max3_u32 v48, v48, v46, v47\nv_max_u32 v48, v48, v49")
        A("v_cmp_eq_u32 vcc, -1, v48")
        A("s_sub_u32 s95, s95, 1")
        A(f"s_cmp_eq_u32 s95, 0\ns_cbranch_scc1 L_poll{name}_done")
        A(f"s_cbranch_vccz L_poll{name}_done")
        A(f"s_sleep 2\ns_branch L_poll{name}")
        A(f"L_poll{name}_done:")
        for r in range(4): A(f"v_add_f32 v{40+r}, v{40+r}, v{44+r}")
        A("v_permlane32_swap_b32 v40, v41\nv_permlane32_swap_b32 v42, v43")
        A("v_add_f32 v40, v40, v41\nv_add_f32 v42, v42, v43")
        A("v_permlane16_swap_b32 v40, v42")
        A(f"v_add_f32 v{dst}, v40, v42")
        A(f"v_add_f32_dpp v{dst}, v{dst}, v{dst} row_ror:4 {DPPF}")
        A(f"v_add_f32_dpp v{dst}, v{dst}, v{dst} row_ror:8 {DPPF}")
    A("s_cmp_lg_u32 s5, 0\ns_cbranch_scc1 L_noy")
    poll_reduce("y", WS_Y, 240)
    bf16r(240, 240)
    A(f"v_mul_f32 v240, v240, v{RS}"); bf16r(240, 240)
    A(f"v_add_f32 v240, v{XC}, v240"); bf16r(240, 240)
    A(f"v_sub_f32 v241, 1.0, v{G}"); bf16r(241, 241)
    A("v_mul_f32 v240, v241, v240"); bf16r(240, 240)
    A("s_lshl_b32 s7, s4, 10\nv_add_u32 v236, s7, v236")
    A("L_noy:")
    A("v_lshlrev_b32 v33, 3, v2")
    A("s_waitcnt vmcnt(0)")
    stamp(5)
    A("s_barrier")
    for w in range(4):
        A(f"ds_read_b64 v[{244+2*w}:{245+2*w}], v33 offset:{L_O + 512*w}")
    stamp(6)
    A("s_waitcnt lgkmcnt(0)")
    A("v_add_f32 v244, v244, v246\nv_add_f32 v248, v248, v250\nv_add_f32 v245, v245, v247\nv_add_f32 v249, v249, v251")
    A("v_add_f32 v244, v244, v248\nv_add_f32 v245, v245, v249")
    A(f"v_cvt_pk_bf16_f32 v{X0}, v244, v244\nv_cvt_pk_bf16_f32 v{X1}, v245, v245")
    gemv(36, 32, lambda j: ((X0, X1)[j & 1], j >> 1), lambda j: BUF + 4 * j)
    for r in range(4): A(f"v_min_u32 v{36+r}, -2, v{36+r}")
    A("s_mov_b32 exec_hi, 0")
    A(f"buffer_store_dwordx4 v[36:39], v32, s[{S_WS}:{S_WS+3}], 0 offen sc1")
    A("s_mov_b64 exec, -1")
    A("s_cmp_lg_u32 s5, 0\ns_cbranch_scc1 L_hend")
    poll_reduce("a", WS_A, 241)
    bf16r(241, 241)
    A(f"v_mul_f32 v241, v{G}, v241"); bf16r(241, 241)
    A("v_add_f32 v241, v241, v240")
    A("v_cvt_pk_bf16_f32 v241, v241, v241")
    A("s_mov_b32 exec_lo, 0x000f000f\ns_mov_b32 exec_hi, 0x000f000f")
    A(f"buffer_store_short v241, v236, s[{S_OUT}:{S_OUT+3}], 0 offen")
    A("L_hend:")
    if ts:
        A("s_waitcnt vmcnt(0)")
        stamp(7)
        A("s_add_u32 s5, s5, 4")
        ts_store(8)
    A("L_done:\ns_endpgm")
    A.raw(f'''.section .rodata,"a"
.p2align 6
.amdhsa_kernel {KN}
  .amdhsa_next_free_vgpr 256
  .amdhsa_next_free_sgpr 102
  .amdhsa_accum_offset 256
  .amdhsa_group_segment_fixed_size 0
  .amdhsa_kernarg_size 112
  .amdhsa_user_sgpr_count 2
  .amdhsa_user_sgpr_kernarg_segment_ptr 1
  .amdhsa_system_sgpr_workgroup_id_x 1
  .amdhsa_float_denorm_mode_32 3
.end_amdhsa_kernel''')
    return A.text(), A

if __name__ == "__main__":
    import argparse
    ap = argparse.ArgumentParser()
    ap.add_argument("-o", default="main.s")
    ap.add_argument("kv", nargs="*")
    a = ap.parse_args()
    kw = {}
    for s in a.kv:
        k, v = s.split("=")
        try: v = int(v)
        except ValueError: pass
        kw[k] = v
    txt, A = gen(**kw)
    open(a.o, "w").write(txt)
    print(a.o, "lines", len(A.lines), "auto-nops", A.nops)
```

```python
import sys, struct
from asmlib import Asm
KN = "gated_mix__mha_block_cached__moe_arch_mod__decode_kernel"
HDR = open("gated_mix__mha_block_cached__moe_arch_mod__decode.s.ref").read().split("; Override launch")[0] if False else ""

def f32(x): return "0x%08x" % struct.unpack("<I", struct.pack("<f", x))[0]
LOG2E = 1.4426950408889634
SCALE = 128 ** -0.5
DPPF = "row_mask:0xf bank_mask:0xf"
def brev4(n): return ((n & 1) << 3) | ((n & 2) << 1) | ((n & 4) >> 1) | ((n & 8) >> 3)

L_Q, L_GU, L_SM, L_O = 0, 2048, 4096, 4608
LDS_BYTES = 8192
WS_A, WS_Y, WS_TS = 0, 1 << 20, 4 << 20

def gen(W=5, R=40, W0=5, nB1=37, rate=2, burst2=4, hwin=2, wflag="", ts=False, kvflag="nt", prio=True, spin=1 << 22):
    A = Asm()
    A.raw(f"; @launch grid=(256,1,1) block=(512,1,1) lds={LDS_BYTES}")
    A.raw('.amdgcn_target "amdgcn-amd-amdhsa--gfx950"')
    A.raw(f".text\n.globl {KN}\n.p2align 8\n.type {KN},@function\n{KN}:")
    tsn = [0]
    def stamp(i):
        if ts: A(f"s_memrealtime s[{64+2*i}:{65+2*i}]") if False else A(f"s_memrealtime s[{TSB+2*i}:{TSB+1+2*i}]")
    TSB = 76
    A("s_cmp_ge_u32 s2, 256\ns_cbranch_scc1 L_done")
    stamp(0)
    A("s_load_dwordx16 s[16:31], s[0:1], 0")
    A("s_load_dwordx8 s[32:39], s[0:1], 64")
    A("s_load_dwordx4 s[40:43], s[0:1], 96")
    if hmap == 0:
        A("s_and_b32 s3, s2, 31")
        A("s_lshr_b32 s4, s2, 5")
    elif hmap == 1:
        A("s_and_b32 s3, s2, 7\ns_lshl_b32 s3, s3, 2\ns_bfe_u32 s4, s2, 0x20003\ns_or_b32 s3, s3, s4\ns_lshr_b32 s4, s2, 5")
    elif hmap == 2:
        A("s_bfe_u32 s3, s2, 0x20001\ns_lshl_b32 s3, s3, 3\ns_bfe_u32 s4, s2, 0x30003\ns_or_b32 s3, s3, s4")
        A("s_and_b32 s4, s2, 1\ns_lshl_b32 s4, s4, 2\ns_lshr_b32 s6, s2, 6\ns_or_b32 s4, s4, s6")
    elif hmap == 3:
        A("s_bfe_u32 s3, s2, 0x10002\ns_lshl_b32 s3, s3, 4\ns_bfe_u32 s4, s2, 0x40003\ns_or_b32 s3, s3, s4")
        A("s_and_b32 s4, s2, 3\ns_lshl_b32 s4, s4, 1\ns_lshr_b32 s6, s2, 7\ns_or_b32 s4, s4, s6")
    elif hmap == 4:
        A("s_lshr_b32 s3, s2, 3\ns_and_b32 s4, s2, 7")
    if ts: A("s_mov_b32 s100, s2")
    A("s_lshl_b32 s2, s4, 5\ns_or_b32 s2, s2, s3")
    A("v_lshrrev_b32 v1, 6, v0")
    A("v_and_b32 v2, 63, v0")
    A("v_readfirstlane_b32 s5, v1")
    A("v_and_b32 v3, 15, v2")
    A("v_lshrrev_b32 v4, 4, v2")
    A("v_mov_b32 v10, 0xffff")
    A("v_mov_b32 v11, 0xffff0000")
    for r in range(4):
        A(f"v_cmp_eq_u32 vcc, {2*r}, v3")
        A(f"v_cndmask_b32 v{6+r}, 0, v10, vcc")
        A(f"v_cmp_eq_u32 vcc, {2*r+1}, v3")
        A(f"v_cndmask_b32 v{6+r}, v{6+r}, v11, vcc")
    A("s_mov_b32 s92, 0xffff0000")
    A(f"s_mov_b32 s93, {f32(LOG2E)}")
    A("s_cmp_ge_u32 s5, 4\ns_cbranch_scc1 L_helper")

    def bf16r(d, s):
        A(f"v_cvt_pk_bf16_f32 v{d}, v{s}, v{s}")
        A(f"v_and_b32 v{d}, s92, v{d}")
    def wave_reduce(op, v, t):
        for d in (8, 4, 2, 1):
            A(f"{op}_dpp v{v}, v{v}, v{v} row_ror:{d} {DPPF}")
        for p in ("v_permlane16_swap_b32", "v_permlane32_swap_b32"):
            A(f"v_mov_b32 v{t}, v{v}")
            A(f"{p} v{v}, v{t}")
            A(f"{op} v{v}, v{v}, v{t}")
    def buildA(aset, src, lane):
        for r in range(4):
            A(f"v_and_b32_dpp v{aset+r}, v{src}, v{6+r} row_newbcast:{lane} {DPPF}")
    def ts_store(nst):
        if not ts: return
        A("s_getreg_b32 s94, hwreg(HW_REG_XCC_ID)")
        A("s_waitcnt lgkmcnt(0)")
        A("s_lshl_b32 s95, s100, 3\ns_add_u32 s95, s95, s5\ns_lshl_b32 s95, s95, 6")
        A(f"s_add_u32 s95, s95, {WS_TS}")
        A("s_mov_b32 s96, s42\ns_and_b32 s97, s43, 0xffff\ns_mov_b32 s98, 0x1000000\ns_mov_b32 s99, 0x00020000")
        A("s_mov_b64 exec, 1")
        A("v_mov_b32 v1, s95")
        for i in range(8):
            A(f"v_mov_b32 v{16+i}, s{TSB+2*i}")
        A("v_mov_b32 v24, s94")
        A("buffer_store_dwordx4 v[16:19], v1, s[96:99], 0 offen")
        A("buffer_store_dwordx4 v[20:23], v1, s[96:99], 0 offen offset:16")
        A("buffer_store_dword v24, v1, s[96:99], 0 offen offset:32")
        if dbgts:
            lab = "L_dts%d" % len(A.lines)
            A(f"s_cmp_lg_u32 s5, 4\ns_cbranch_scc1 {lab}")
            A("s_mov_b32 s96, s40\ns_and_b32 s97, s41, 0xffff\ns_mov_b32 s98, 256\ns_mov_b32 s99, 0x00020000")
            A("v_mov_b32 v1, 0")
            A("v_not_b32 v25, v16")
            A("buffer_atomic_umax v25, v1, s[96:99], 0 offen offset:4")
            for i, st_ in enumerate((0, 1, 2, 4, 6, 7)):
                A(f"buffer_atomic_umax v{16+st_}, v1, s[96:99], 0 offen offset:{8+4*i}")
            for i, st_ in enumerate((1, 2, 4, 6, 7)):
                A(f"v_not_b32 v25, v{16+st_}")
                A(f"buffer_atomic_umax v25, v1, s[96:99], 0 offen offset:{36+4*i}")
                A("s_waitcnt vmcnt(0)")
            A(f"{lab}:")
        A("s_waitcnt vmcnt(0)")

    ASET = [16, 20, 24]; ACC = 12; Q = 28; T0 = 32; S0 = 64; TMP = 80; RING = 96
    assert RING + 4 * R <= 256
    if prio: A("s_setprio 3")
    A("v_lshlrev_b32 v1, 12, v1")
    A("v_lshl_add_u32 v1, v2, 4, v1")
    A("s_lshl_b32 s6, s2, 20")
    A("s_mov_b32 s44, 0xcccccccc\ns_mov_b32 s45, 0xcccccccc\ns_mov_b32 s46, 0xaaaaaaaa\ns_mov_b32 s47, 0xaaaaaaaa")
    A("s_waitcnt lgkmcnt(0)")
    stamp(1)
    A("s_add_u32 s8, s18, s6\ns_addc_u32 s9, s19, 0\ns_and_b32 s9, s9, 0xffff\ns_mov_b32 s10, 0x100000\ns_mov_b32 s11, 0x00020000")
    A("s_add_u32 s12, s20, s6\ns_addc_u32 s13, s21, 0\ns_and_b32 s13, s13, 0xffff\ns_mov_b32 s14, 0x100000\ns_mov_b32 s15, 0x00020000")
    A("s_mov_b32 s7, 0")
    NL = 256
    st = dict(issued=0, consumed=0, landed=0)
    def ring(n): return RING + 4 * (n % R)
    def issue():
        n = st["issued"]
        assert n - R < st["consumed"], (n, st)
        srd = 8 if n < NL else 12
        if n == NL: A("s_mov_b32 s7, 0")
        r = ring(n)
        A(f"buffer_load_dwordx4 v[{r}:{r+3}], v1, s[{srd}:{srd+3}], s7 offen offset:{(n & 3) * 1024} {kvflag}")
        if n & 3 == 3 and n != NL - 1 and n != 2 * NL - 1: A("s_add_u32 s7, s7, 0x4000")
        st["issued"] += 1
    def waitvm(k):
        k = max(k, 0)
        if st["issued"] - k > st["landed"]:
            A(f"s_waitcnt vmcnt({k})")
            st["landed"] = st["issued"] - k
    def T(n): return T0 + (n & 31)
    def tree(e, lvl):
        a = T(e - (1 << lvl) + 1); b = T(e - (1 << (lvl - 1)) + 1)
        if lvl == 1:
            A(f"v_add_f32_dpp v{a}, v{a}, v{a} row_ror:8 row_mask:0xf bank_mask:0x3")
            A(f"v_add_f32_dpp v{a}, v{b}, v{b} row_ror:8 row_mask:0xf bank_mask:0xc")
        elif lvl == 2:
            A(f"v_add_f32_dpp v{a}, v{a}, v{a} row_shl:4 row_mask:0xf bank_mask:0x5")
            A(f"v_add_f32_dpp v{a}, v{b}, v{b} row_shr:4 row_mask:0xf bank_mask:0xa")
        else:
            qp = "[2,3,0,1]" if lvl == 3 else "[1,0,3,2]"
            m = "s[44:45]" if lvl == 3 else "s[46:47]"
            A(f"v_add_f32_dpp v{a}, v{a}, v{a} quad_perm:{qp} {DPPF}")
            A(f"v_add_f32_dpp v{b}, v{b}, v{b} quad_perm:{qp} {DPPF}")
            A(f"v_cndmask_b32 v{a}, v{a}, v{b}, {m}")
            if lvl == 4:
                k = e >> 4
                bf16r(TMP, a)
                A(f"v_mul_f32 v{TMP}, {f32(SCALE)}, v{TMP}")
                bf16r(S0 + k, TMP)
                if k == 0: A(f"v_mov_b32 v{TMP+1}, v{S0}")
                else: A(f"v_max_f32 v{TMP+1}, v{TMP+1}, v{S0+k}")
    def tree_at(n):
        for lvl in (4, 3, 2, 1):
            e = n - lvl
            if 0 <= e < NL and (e + 1) % (1 << lvl) == 0: tree(e, lvl)
    def consume():
        n = st["consumed"]
        assert n < st["landed"], (n, st)
        r = ring(n)
        if n < NL:
            t = T(n)
            A(f"v_dot2_f32_bf16 v{t}, v{r}, v{Q}, 0")
            for j in range(1, 4): A(f"v_dot2_f32_bf16 v{t}, v{r+j}, v{Q+j}, v{t}")
            tree_at(n)
        else:
            m = n - NL
            a = ASET[m % 3]
            c = "0" if m == 0 else f"v[{ACC}:{ACC+3}]"
            A(f"v_mfma_f32_16x16x32_bf16 v[{ACC}:{ACC+3}], v[{a}:{a+3}], v[{r}:{r+3}], {c}")
            if m + 2 < NL: buildA(ASET[(m + 2) % 3], S0 + ((m + 2) >> 4), brev4((m + 2) & 15))
        st["consumed"] += 1
    def win(n):
        return max(Wp, W0 - max(0, n - W0)) if n < 64 else W
    while st["issued"] < nB1:
        waitvm(win(st["issued"]) - 1); issue()
    stamp(2)
    A("s_barrier")
    stamp(3)
    A("v_lshlrev_b32 v5, 5, v3")
    for w in range(4):
        A(f"ds_read_b128 v[{T0+8*w}:{T0+8*w+3}], v5 offset:{L_Q + 512*w}")
        A(f"ds_read_b128 v[{T0+8*w+4}:{T0+8*w+7}], v5 offset:{L_Q + 512*w + 16}")
    for _ in range(2):
        waitvm(W - 1 + 2); issue()
    A("s_waitcnt lgkmcnt(0)")
    for j in range(8):
        A(f"v_add_f32 v{T0+j}, v{T0+j}, v{T0+8+j}")
        A(f"v_add_f32 v{T0+16+j}, v{T0+16+j}, v{T0+24+j}")
    for j in range(8):
        A(f"v_add_f32 v{T0+j}, v{T0+j}, v{T0+16+j}")
    for j in range(4):
        A(f"v_cvt_pk_bf16_f32 v{Q+j}, v{T0+2*j}, v{T0+2*j+1}")
    def step(limit):
        if st["issued"] < 2 * NL and st["issued"] - R < st["consumed"]:
            n = st["issued"]
            w_ = int(str(wpat)[n % len(str(wpat))])
            if n < k6 or NL + 8 <= n < NL + v6: w_ = int(str(wbusy)[n % len(str(wbusy))])
            if n >= 2 * NL - endN: w_ = endW
            waitvm(w_ - 1); issue()
        else:
            waitvm(st["issued"] - st["consumed"] - 1)
        k = 0
        while k < rate and st["consumed"] < min(limit, st["landed"]):
            consume(); k += 1
    while st["consumed"] < NL:
        step(NL)
    for _ in range(burst2): issue()
    for n in range(NL, NL + 5): tree_at(n)
    stamp(4)
    MX, SUM, NM = TMP + 1, TMP + 2, TMP + 3
    wave_reduce("v_max_f32", MX, TMP)
    A(f"v_mul_f32 v{NM}, s93, v{MX}")
    for k in range(16):
        A(f"v_fma_f32 v{S0+k}, v{S0+k}, s93, -v{NM}")
    for k in range(16):
        A(f"v_exp_f32 v{S0+k}, v{S0+k}")
    for k in range(8):
        A(f"v_add_f32 v{T0+k}, v{S0+2*k}, v{S0+2*k+1}")
    for wd in (4, 2, 1):
        for k in range(wd):
            A(f"v_add_f32 v{T0+k}, v{T0+k}, v{T0+wd+k}")
    A(f"v_mov_b32 v{SUM}, v{T0}")
    wave_reduce("v_add_f32", SUM, TMP)
    A(f"v_mov_b32 v{T0}, v{MX}\nv_mov_b32 v{T0+1}, v{SUM}")
    A(f"s_lshl_b32 s48, s5, 3\nv_mov_b32 v5, s48")
    A("s_mov_b64 exec, 1")
    A(f"ds_write_b64 v5, v[{T0}:{T0+1}] offset:{L_SM}")
    A("s_mov_b64 exec, -1")
    A("v_mov_b32 v5, 0")
    A("s_waitcnt lgkmcnt(0)")
    A("s_barrier")
    A(f"ds_read_b128 v[{T0}:{T0+3}], v5 offset:{L_SM}")
    A(f"ds_read_b128 v[{T0+4}:{T0+7}], v5 offset:{L_SM+16}")
    stamp(5)
    waitvm(W - 1); issue()
    A("s_waitcnt lgkmcnt(0)")
    GM = T0 + 8
    A(f"v_max3_f32 v{GM}, v{T0}, v{T0+2}, v{T0+4}")
    A(f"v_max_f32 v{GM}, v{GM}, v{T0+6}")
    for i in range(4):
        A(f"v_sub_f32 v{T0+2*i}, v{T0+2*i}, v{GM}")
    A(f"v_sub_f32 v{MX}, v{MX}, v{GM}")
    for i in range(4):
        A(f"v_mul_f32 v{T0+2*i}, s93, v{T0+2*i}")
    A(f"v_mul_f32 v{MX}, s93, v{MX}")
    for i in range(4):
        A(f"v_exp_f32 v{T0+2*i}, v{T0+2*i}")
    A(f"v_exp_f32 v{MX}, v{MX}")
    A(f"v_mul_f32 v{SUM}, v{T0}, v{T0+1}")
    for i in range(1, 4):
        A(f"v_fma_f32 v{SUM}, v{T0+2*i}, v{T0+2*i+1}, v{SUM}")
    A(f"v_rcp_f32 v{NM}, v{SUM}")
    A(f"v_fma_f32 v{TMP}, -v{SUM}, v{NM}, 1.0")
    A(f"v_fma_f32 v{NM}, v{TMP}, v{NM}, v{NM}")
    A(f"v_mul_f32 v{NM}, v{NM}, v{MX}")
    for k in range(16):
        A(f"v_mul_f32 v{S0+k}, v{S0+k}, v{NM}")
    for k in range(16):
        A(f"v_cvt_pk_bf16_f32 v{S0+k}, v{S0+k}, v{S0+k}")
    buildA(ASET[0], S0, brev4(0)); buildA(ASET[1], S0, brev4(1))
    while st["consumed"] < 2 * NL:
        step(2 * NL)
    stamp(6)
    A("v_lshlrev_b32 v5, 5, v3")
    A("v_lshl_add_u32 v5, v4, 4, v5")
    A("s_lshl_b32 s48, s5, 9\nv_add_u32 v5, s48, v5")
    A("s_mov_b32 exec_hi, 0")
    A(f"ds_write_b128 v5, v[{ACC}:{ACC+3}] offset:{L_O}")
    A("s_waitcnt lgkmcnt(0)")
    A("s_barrier")
    stamp(7)
    ts_store(8)
    A("s_endpgm")

    A("L_helper:")
    A.fence(4)
    stamp0 = stamp
    def stamp(i, d=0):
        if d == diag or i <= 1: stamp0(i)
    BUF = 96; DN = 40; X0, X1 = 28, 29
    DNR = lambda t: DN + 4 * t if t < 14 else 248 + 4 * (t - 14)
    A("s_sub_u32 s5, s5, 4")
    A("s_mov_b32 s6, s3")
    A("s_lshl_b32 s7, s5, 7")
    A("v_add_u32 v5, s7, v4")
    A("v_lshlrev_b32 v30, 13, v5")
    A("v_lshl_add_u32 v30, v3, 4, v30")
    A("v_lshl_add_u32 v31, v3, 2, v5")
    A("v_lshlrev_b32 v31, 1, v31")
    A("s_waitcnt lgkmcnt(0)")
    stamp(1)
    def srd(d, p, off_s, size):
        if off_s is None:
            A(f"s_mov_b32 s{d}, s{p}\ns_and_b32 s{d+1}, s{p+1}, 0xffff")
        else:
            A(f"s_add_u32 s{d}, s{p}, {off_s}\ns_addc_u32 s{d+1}, s{p+1}, 0\ns_and_b32 s{d+1}, s{d+1}, 0xffff")
        A(f"s_mov_b32 s{d+2}, {size}\ns_mov_b32 s{d+3}, 0x00020000")
    S_WQ, S_X, S_WS, S_G, S_U, S_D, S_WO, S_OUT = 8, 12, 44, 48, 52, 56, 60, 64
    S_GW, S_WR, S_DBG = 68, 72, 36
    srd(S_WS, 42, None, 16 << 20)
    A("s_lshl_b32 s7, s4, 10"); srd(S_X, 16, "s7", 1024)
    A(f"s_lshl_b32 s7, s3, 8\ns_sub_u32 s94, {512*8192}, s7"); srd(S_WQ, 22, "s7", "s94")
    vm = dict(n=0)
    def V(text):
        for tag, sr in (("q", S_WQ), ("g", S_G), ("g", S_U), ("d", S_D), ("o", S_WO)):
            if tag in skip and f"s[{sr}:{sr+3}]" in text and "load" in text and " s7 " in text:
                return vm["n"] - 1
        A(text); vm["n"] += 1; return vm["n"] - 1
    def wait_idx(i): A(f"s_waitcnt vmcnt({min(63, vm['n'] - 1 - i)})")
    A("s_nop 0")
    def gemv(acc, nload, src_of, buf_of, wait_of=None):
        for j in range(min(2, nload)): buildA(ASET[j % 3], *src_of(j))
        for j in range(nload):
            if wait_of: wait_of(j)
            a = ASET[j % 3]; r = buf_of(j)
            c = "0" if j == 0 else f"v[{acc}:{acc+3}]"
            A(f"v_mfma_f32_16x16x32_bf16 v[{acc}:{acc+3}], v[{a}:{a+3}], v[{r}:{r+3}], {c}")
            if j + 2 < nload: buildA(ASET[(j + 2) % 3], *src_of(j + 2))
    xsrc = lambda j: ((X0, X1)[j >> 4], j & 15)
    V(f"buffer_load_ushort v33, v31, s[{S_X}:{S_X+3}], 0 offen")
    ix = V(f"buffer_load_ushort v34, v31, s[{S_X}:{S_X+3}], 0 offen offset:128")
    iw = []
    def wq_issue(j):
        if j: A(f"s_mov_b32 s7, {j*32768}")
        iw.append(V(f"buffer_load_dwordx4 v[{BUF+4*j}:{BUF+4*j+3}], v30, s[{S_WQ}:{S_WQ+3}], {'s7' if j else '0'} offen {wflag}"))
    for j in range(qlag): wq_issue(j)
    wait_idx(ix)
    stamp(2, 1)
    A(f"v_lshl_or_b32 v{X0}, v33, 16, v33\nv_lshl_or_b32 v{X1}, v34, 16, v34")
    def wq_wait(j):
        wait_idx(iw[j])
        if j + qlag < 32: wq_issue(j + qlag)
        if j == 0: stamp(3, 1)
        if j == 15: stamp(4, 1)
        if j == 31: stamp(5, 1)
    gemv(36, 32, xsrc, lambda j: BUF + 4 * j, wq_wait)
    A("v_lshlrev_b32 v35, 5, v3\nv_lshl_add_u32 v35, v4, 4, v35\ns_lshl_b32 s7, s5, 9\nv_add_u32 v35, s7, v35")
    A("s_mov_b32 exec_hi, 0")
    A(f"ds_write_b128 v35, v[36:39] offset:{L_Q}")
    A("s_mov_b64 exec, -1")
    A("s_waitcnt lgkmcnt(0)")
    stamp(6, 1)
    stamp(2)
    A("s_barrier")
    stamp(7, 1)
    A("s_min_u32 s7, s6, 27\ns_lshl_b32 s7, s7, 16"); srd(S_D, 34, "s7", 64 * 1024)
    A("s_lshl_b32 s7, s3, 17"); srd(S_WO, 24, "s7", 128 * 1024)
    srd(S_OUT, 38, None, 8192)
    srd(S_GW, 36, None, 1024); srd(S_WR, 28, None, 1024); srd(S_DBG, 40, None, 256)
    A("s_cmp_lg_u32 s5, 0\ns_cbranch_scc1 L_nosig")
    A("s_lshl_b32 s7, s2, 11\nv_lshl_add_u32 v32, v2, 4, s7")
    A("v_mov_b32 v12, -1\nv_mov_b32 v13, -1\nv_mov_b32 v14, -1\nv_mov_b32 v15, -1")
    A(f"s_mov_b32 s94, {WS_Y}")
    for so in ("0", "s94"):
        for off in (0, 1024):
            A(f"buffer_store_dwordx4 v[12:15], v32, s[{S_WS}:{S_WS+3}], {so} offen offset:{off} sc1")
    A("s_lshl_b32 s7, s4, 5\nv_mov_b32 v33, s7\nv_mov_b32 v34, 1")
    A("s_waitcnt vmcnt(0)")
    A("s_mov_b64 exec, 1")
    A(f"buffer_atomic_add v34, v33, s[{S_DBG}:{S_DBG+3}], 0 offen sc1")
    A("s_mov_b64 exec, -1")
    A("s_waitcnt vmcnt(0)")
    A("L_nosig:")
    A.fence(2)
    vm["n"] = 0
    def paced(text):
        if vm["n"] >= hwin: A(f"s_waitcnt vmcnt({hwin-1})")
        return V(text)
    A("v_lshlrev_b32 v31, 10, v4\nv_lshl_add_u32 v31, v3, 4, v31\ns_lshl_b32 s7, s5, 8\nv_add_u32 v31, s7, v31")
    A("s_cmp_ge_u32 s6, 28\ns_cbranch_scc1 L_noffn1")
    A("s_movk_i32 s7, 3584\nv_mul_lo_u32 v30, v5, s7")
    A("v_and_b32 v33, 7, v3\nv_lshl_add_u32 v30, v33, 4, v30")
    A("s_lshl_b32 s7, s6, 7\nv_add_u32 v30, s7, v30")
    A("v_cmp_gt_u32 vcc, 8, v3")
    A("v_mov_b32 v10, s32\nv_mov_b32 v11, s30\nv_cndmask_b32 v10, v10, v11, vcc")
    A("v_mov_b32 v33, s33\nv_mov_b32 v11, s31\nv_cndmask_b32 v11, v33, v11, vcc")
    A("v_add_co_u32 v10, vcc, v10, v30\nv_addc_co_u32 v11, vcc, 0, v11, vcc")
    A("s_movk_i32 s7, 14336")
    for j in range(32):
        if "g" in skip and j: continue
        paced(f"global_load_dwordx4 v[{BUF+4*j}:{BUF+4*j+3}], v[10:11], off {wflag}")
        if j < 31: A("v_add_co_u32 v10, vcc, s7, v10\nv_addc_co_u32 v11, vcc, 0, v11, vcc")
    igu = vm["n"] - 1
    for t in range(2):
        if t: A(f"s_mov_b32 s7, {t*4096}")
        paced(f"buffer_load_dwordx4 v[{DNR(t)}:{DNR(t)+3}], v31, s[{S_D}:{S_D+3}], {'s7' if t else '0'} offen {wflag}")
    wait_idx(igu)
    gemv(36, 32, xsrc, lambda j: BUF + 4 * j)
    A("s_mov_b32 exec_hi, 0")
    A(f"ds_write_b128 v35, v[36:39] offset:{L_GU}")
    A("s_mov_b64 exec, -1")
    for t in range(2, 16):
        A(f"s_mov_b32 s7, {t*4096}")
        paced(f"buffer_load_dwordx4 v[{DNR(t)}:{DNR(t)+3}], v31, s[{S_D}:{S_D+3}], s7 offen {wflag}")
    A("s_waitcnt vmcnt(0)")
    A("L_noffn1:")
    A.fence(2)
    vm["n"] = 0
    A("v_lshlrev_b32 v33, 4, v2")
    paced(f"buffer_load_dwordx4 v[224:227], v33, s[{S_X}:{S_X+3}], 0 offen")
    paced(f"buffer_load_dwordx4 v[228:231], v33, s[{S_GW}:{S_GW+3}], 0 offen")
    paced(f"buffer_load_dwordx4 v[232:235], v33, s[{S_WR}:{S_WR+3}], 0 offen")
    A("v_and_b32 v33, 1, v4\nv_lshlrev_b32 v33, 1, v33\nv_lshrrev_b32 v34, 1, v4\nv_or_b32 v33, v33, v34")
    A("v_and_b32 v34, 3, v2\nv_lshl_add_u32 v33, v34, 2, v33\ns_lshl_b32 s7, s3, 4\nv_add_u32 v33, s7, v33")
    A("v_lshlrev_b32 v236, 1, v33")
    paced(f"buffer_load_ushort v237, v236, s[{S_X}:{S_X+3}], 0 offen")
    A("s_waitcnt vmcnt(0)")
    G, RS, XC = 238, 239, 237
    for j in range(4):
        A(f"v_lshlrev_b32 v240, 16, v{224+j}\nv_and_b32 v241, s92, v{224+j}")
        A(f"v_lshlrev_b32 v242, 16, v{228+j}\nv_and_b32 v243, s92, v{228+j}")
        A("v_mul_f32 v240, v240, v242\nv_mul_f32 v241, v241, v243")
        A("v_cvt_pk_bf16_f32 v240, v240, v241")
        A("v_and_b32 v241, s92, v240\nv_lshlrev_b32 v240, 16, v240")
        if j == 0: A(f"v_add_f32 v{G}, v240, v241")
        else: A(f"v_add_f32 v{G}, v{G}, v240\nv_add_f32 v{G}, v{G}, v241")
    A(f"v_dot2_f32_bf16 v{RS}, v224, v232, 0")
    for j in range(1, 4): A(f"v_dot2_f32_bf16 v{RS}, v{224+j}, v{232+j}, v{RS}")
    wave_reduce("v_add_f32", G, 240)
    wave_reduce("v_add_f32", RS, 240)
    def sigmoid(d):
        bf16r(d, d)
        A(f"v_mul_f32 v{d}, {f32(-LOG2E)}, v{d}")
        A(f"v_exp_f32 v{d}, v{d}")
        A(f"v_add_f32 v{d}, 1.0, v{d}")
        A(f"v_rcp_f32 v{d}, v{d}")
        bf16r(d, d)
    sigmoid(G); sigmoid(RS)
    A(f"v_lshlrev_b32 v{XC}, 16, v{XC}")
    A("s_waitcnt lgkmcnt(0)")
    stamp(3)
    A("s_barrier")
    stamp(4)
    A("v_lshl_add_u32 v33, v3, 2, v4\nv_lshlrev_b32 v33, 2, v33")
    for w in range(4):
        A(f"ds_read2_b32 v[{240+2*w}:{241+2*w}], v33 offset0:{(L_GU + 512*w)//4 - 512} offset1:{(L_GU + 512*w)//4 + 64 - 512}") if False else None
    A(f"v_add_u32 v34, {L_GU}, v33")
    for w in range(4):
        if w == 2: A("v_add_u32 v34, 1024, v34")
        o0 = (w & 1) * 128
        A(f"ds_read2_b32 v[{240+2*w}:{241+2*w}], v34 offset0:{o0} offset1:{o0+64}")
    A("s_lshl_b32 s7, s4, 5\nv_mov_b32 v33, s7")
    A(f"s_mov_b32 s95, {spin}")
    A("L_pollc:")
    A(f"buffer_load_dword v34, v33, s[{S_DBG}:{S_DBG+3}], 0 offen sc1")
    A("s_waitcnt vmcnt(0)")
    A("v_readfirstlane_b32 s7, v34")
    A("s_sub_u32 s95, s95, 1")
    A("s_cmp_eq_u32 s95, 0\ns_cbranch_scc1 L_pollc_done")
    A("s_cmp_ge_u32 s7, 32\ns_cbranch_scc1 L_pollc_done")
    A("s_sleep 8\ns_branch L_pollc")
    A("L_pollc_done:")
    A.fence(2)
    vm["n"] = 0
    A("s_waitcnt lgkmcnt(0)")
    A("v_add_f32 v240, v240, v242\nv_add_f32 v244, v244, v246\nv_add_f32 v241, v241, v243\nv_add_f32 v245, v245, v247")
    A("v_add_f32 v240, v240, v244\nv_add_f32 v241, v241, v245")
    bf16r(240, 240); bf16r(241, 241)
    A(f"v_mul_f32 v242, {f32(-LOG2E)}, v240\nv_exp_f32 v242, v242\nv_add_f32 v242, 1.0, v242\nv_rcp_f32 v242, v242")
    A("v_mul_f32 v242, v240, v242")
    bf16r(242, 242)
    A("v_mul_f32 v242, v242, v241")
    A("v_cvt_pk_bf16_f32 v242, v242, v242")
    gemv(36, 16, lambda t: (242, t), DNR)
    A("s_cmp_lt_u32 s6, 28\ns_cbranch_scc1 L_ffn2")
    A.fence(8)
    A("v_mov_b32 v36, 0\nv_mov_b32 v37, 0\nv_mov_b32 v38, 0\nv_mov_b32 v39, 0")
    A("L_ffn2:")
    A.fence(8)
    A("v_lshrrev_b32 v32, 1, v3\nv_lshlrev_b32 v32, 11, v32\nv_and_b32 v33, 1, v3\nv_lshl_add_u32 v32, v33, 5, v32\nv_lshl_add_u32 v32, v4, 4, v32")
    A("s_lshl_b32 s7, s4, 16\ns_lshl_b32 s94, s5, 14\ns_add_u32 s7, s7, s94\ns_lshl_b32 s94, s3, 6\ns_add_u32 s7, s7, s94\nv_add_u32 v32, s7, v32")
    for r in range(4): A(f"v_min_u32 v{36+r}, -2, v{36+r}")
    A(f"s_mov_b32 s94, {WS_Y}")
    A("s_mov_b32 exec_hi, 0")
    V(f"buffer_store_dwordx4 v[36:39], v32, s[{S_WS}:{S_WS+3}], s94 offen sc1")
    A("s_mov_b64 exec, -1")
    A("v_lshlrev_b32 v31, 15, v4\nv_lshl_add_u32 v31, v3, 4, v31\ns_lshl_b32 s7, s5, 8\nv_add_u32 v31, s7, v31")
    for j in range(32):
        if j: A(f"s_mov_b32 s7, {j*1024}")
        paced(f"buffer_load_dwordx4 v[{BUF+4*j}:{BUF+4*j+3}], v31, s[{S_WO}:{S_WO+3}], {'s7' if j else '0'} offen {wflag}")
    A("s_lshl_b32 s7, s2, 11\nv_lshl_add_u32 v30, v2, 4, s7")
    def poll_reduce(name, soff_val, dst):
        A(f"s_mov_b32 s94, {soff_val}\ns_mov_b32 s95, {spin}")
        A(f"L_poll{name}:")
        A(f"buffer_load_dwordx4 v[40:43], v30, s[{S_WS}:{S_WS+3}], s94 offen sc1")
        A(f"buffer_load_dwordx4 v[44:47], v30, s[{S_WS}:{S_WS+3}], s94 offen offset:1024 sc1")
        A("s_waitcnt vmcnt(0)")
        A("v_max3_u32 v48, v40, v41, v42\nv_max3_u32 v49, v43, v44, v45\nv_max3_u32 v48, v48, v46, v47\nv_max_u32 v48, v48, v49")
        A("v_cmp_eq_u32 vcc, -1, v48")
        A("s_sub_u32 s95, s95, 1")
        A(f"s_cmp_eq_u32 s95, 0\ns_cbranch_scc1 L_poll{name}_done")
        A(f"s_cbranch_vccz L_poll{name}_done")
        A(f"s_sleep 2\ns_branch L_poll{name}")
        A(f"L_poll{name}_done:")
        for r in range(4): A(f"v_add_f32 v{40+r}, v{40+r}, v{44+r}")
        A("v_permlane32_swap_b32 v40, v41\nv_permlane32_swap_b32 v42, v43")
        A("v_add_f32 v40, v40, v41\nv_add_f32 v42, v42, v43")
        A("v_permlane16_swap_b32 v40, v42")
        A(f"v_add_f32 v{dst}, v40, v42")
        A(f"v_add_f32_dpp v{dst}, v{dst}, v{dst} row_ror:4 {DPPF}")
        A(f"v_add_f32_dpp v{dst}, v{dst}, v{dst} row_ror:8 {DPPF}")
    A("s_cmp_lg_u32 s5, 0\ns_cbranch_scc1 L_noy")
    poll_reduce("y", WS_Y, 240)
    bf16r(240, 240)
    A(f"v_mul_f32 v240, v240, v{RS}"); bf16r(240, 240)
    A(f"v_add_f32 v240, v{XC}, v240"); bf16r(240, 240)
    A(f"v_sub_f32 v241, 1.0, v{G}"); bf16r(241, 241)
    A("v_mul_f32 v240, v241, v240"); bf16r(240, 240)
    A("s_lshl_b32 s7, s4, 10\nv_add_u32 v236, s7, v236")
    A("L_noy:")
    A("v_lshlrev_b32 v33, 3, v2")
    A("s_waitcnt vmcnt(0)")
    stamp(5)
    A("s_barrier")
    for w in range(4):
        A(f"ds_read_b64 v[{244+2*w}:{245+2*w}], v33 offset:{L_O + 512*w}")
    stamp(6)
    A("s_waitcnt lgkmcnt(0)")
    A("v_add_f32 v244, v244, v246\nv_add_f32 v248, v248, v250\nv_add_f32 v245, v245, v247\nv_add_f32 v249, v249, v251")
    A("v_add_f32 v244, v244, v248\nv_add_f32 v245, v245, v249")
    A(f"v_cvt_pk_bf16_f32 v{X0}, v244, v244\nv_cvt_pk_bf16_f32 v{X1}, v245, v245")
    gemv(36, 32, lambda j: ((X0, X1)[j & 1], j >> 1), lambda j: BUF + 4 * j)
    for r in range(4): A(f"v_min_u32 v{36+r}, -2, v{36+r}")
    A("s_mov_b32 exec_hi, 0")
    A(f"buffer_store_dwordx4 v[36:39], v32, s[{S_WS}:{S_WS+3}], 0 offen sc1")
    A("s_mov_b64 exec, -1")
    A("s_cmp_lg_u32 s5, 0\ns_cbranch_scc1 L_hend")
    poll_reduce("a", WS_A, 241)
    bf16r(241, 241)
    A(f"v_mul_f32 v241, v{G}, v241"); bf16r(241, 241)
    A("v_add_f32 v241, v241, v240")
    A("v_cvt_pk_bf16_f32 v241, v241, v241")
    A("s_mov_b32 exec_lo, 0x000f000f\ns_mov_b32 exec_hi, 0x000f000f")
    A(f"buffer_store_short v241, v236, s[{S_OUT}:{S_OUT+3}], 0 offen")
    A("L_hend:")
    if ts:
        A("s_waitcnt vmcnt(0)")
        stamp(7)
        A("s_add_u32 s5, s5, 4")
        ts_store(8)
    A("L_done:\ns_endpgm")
    A.raw(f'''.section .rodata,"a"
.p2align 6
.amdhsa_kernel {KN}
  .amdhsa_next_free_vgpr 256
  .amdhsa_next_free_sgpr 102
  .amdhsa_accum_offset 256
  .amdhsa_group_segment_fixed_size 0
  .amdhsa_kernarg_size 112
  .amdhsa_user_sgpr_count 2
  .amdhsa_user_sgpr_kernarg_segment_ptr 1
  .amdhsa_system_sgpr_workgroup_id_x 1
  .amdhsa_float_denorm_mode_32 3
.end_amdhsa_kernel''')
    return A.text(), A

if __name__ == "__main__":
    import argparse
    ap = argparse.ArgumentParser()
    ap.add_argument("-o", default="main.s")
    ap.add_argument("kv", nargs="*")
    a = ap.parse_args()
    kw = {}
    for s in a.kv:
        k, v = s.split("=")
        try: v = int(v)
        except ValueError: pass
        kw[k] = v
    txt, A = gen(**kw)
    open(a.o, "w").write(txt)
    print(a.o, "lines", len(A.lines), "auto-nops", A.nops)
```
